```python
import torch

def _softmax(x, axis=-1):
    return torch.softmax(x, dim=axis)
def _gelu(x):
    return torch.nn.functional.gelu(x, approximate="tanh")
def _silu(x):
    return torch.nn.functional.silu(x)
def _sigmoid(x):
    return torch.sigmoid(x)
def _layernorm(x, axis=-1, eps=1e-5):
    m = x.mean(dim=axis, keepdim=True)
    v = x.var(dim=axis, keepdim=True, unbiased=False)
    return (x - m) / torch.sqrt(v + eps)
def _scatter_add(tgt, idx, src, axis=0):
    return tgt.clone().index_add_(axis, idx, src)
def _segment_sum(src, seg, n):
    out = torch.zeros((n,) + src.shape[1:], dtype=src.dtype)
    return out.index_add_(0, seg, src)
def _pad(x, pw):
    flat = tuple(v for pair in reversed(pw) for v in pair)
    return torch.nn.functional.pad(x, flat)

kernel_name = 'standalone__groupnorm__prompt'

def setup_inputs():

    _w = (lambda a: (lambda t: t.to(torch.bfloat16) if t.is_floating_point() else t)(torch.as_tensor(a)))
    B = 1
    G = 32
    cpg = max(1, 448 // G)
    C = G * cpg
    H, W = 16, 4096
    return {
        "x": _w(abs((lambda *s: torch.randn(*s, dtype=torch.bfloat16) * 0.05)(B, C, H, W))),
        "g": _w((lambda *s: torch.randn(*s, dtype=torch.bfloat16) * 0.05)(C) + 1.0),
        "b": _w((lambda *s: torch.randn(*s, dtype=torch.bfloat16) * 0.4)(C)),
    }

def reference(x, g, b):
    G = 32
    B, C, H, W = x.shape[0], x.shape[1], x.shape[2], x.shape[3]
    xr = x.reshape(B, G, C // G, H, W)
    mu = xr.mean(axis=(2, 3, 4), keepdims=True)
    var = ((xr - mu) ** 2).mean(axis=(2, 3, 4), keepdims=True)
    xn = (xr - mu) / torch.sqrt(var + 1e-5)
    xn = xn.reshape(B, C, H, W)
    return xn * g[None, :, None, None] + b[None, :, None, None]
```

```python
import sys, argparse

def gen(NW=8, K=2, LDNT="", STNT="", MIMIC=1, STAMP=0, ORDER=1, SLEEP=2, LDS=0, VGPRPAD=0, PRIO=0,
        name="standalone__groupnorm__prompt", SPIN=0):
    L = []
    A = L.append
    NL = 14 * 16 // NW
    LPC = 16 // NW
    S = NW // K
    MEM = 8 * K
    NS = 8 * NW
    GPS = 32 // K
    GBYTES = 14 * 131072
    nw_elems = NL * 64 * 8
    N = 14 * 65536
    D0 = 24
    nvgpr = D0 + NL * 4
    import struct
    def f2u(f): return struct.unpack('<I', struct.pack('<f', f))[0]
    hdr = open('standalone__groupnorm__prompt.s.ref').read().split('\n')
    for ln in hdr:
        if ln.startswith('; @launch'): break
        A(ln)
    A(f"; @launch grid=(256,1,1) block=({NW*64},1,1) lds={LDS}")
    A('.amdgcn_target "amdgcn-amd-amdhsa--gfx950"')
    A(".text")
    A(f".globl {name}_kernel")
    A(".p2align 8")
    A(f".type {name}_kernel,@function")
    A(f"{name}_kernel:")
    A("    s_cmp_ge_u32 s2, 256")
    A("    s_cbranch_scc1 L_end")
    A("    s_load_dwordx8 s[4:11], s[0:1], 0      ; x, g, b, out")
    A("    s_load_dwordx2 s[12:13], s[0:1], 40    ; ws")
    if STAMP:
        A("    s_memrealtime s[80:81]")
    A("    v_lshrrev_b32 v1, 6, v0")
    A("    v_and_b32 v0, 63, v0                   ; lane")
    A("    v_readfirstlane_b32 s36, v1")
    A("    s_mov_b32 s40, 0xffff0000")
    import math
    lgS = int(math.log2(S)); lgM = int(math.log2(MEM))
    A(f"    s_lshr_b32 s37, s36, {lgS}             ; set k")
    A(f"    s_and_b32 s38, s36, {S-1}")
    A(f"    s_lshr_b32 s39, s2, {lgM}")
    A(f"    s_mul_i32 s41, s37, {GPS}")
    A(f"    s_add_u32 s41, s41, s39                ; s41 = group")
    A(f"    s_and_b32 s39, s2, {MEM-1}             ; member")
    A(f"    s_lshl_b32 s39, s39, {lgS}")
    A(f"    s_add_u32 s38, s38, s39")
    A(f"    s_mul_i32 s39, s41, {GBYTES}")
    A(f"    s_mul_i32 s3, s38, {LPC*1024}")
    A(f"    s_add_u32 s39, s39, s3")
    A(f"    v_lshl_add_u32 v1, v0, 4, s39")
    A(f"    s_mov_b32 s18, {32*GBYTES}")
    A(f"    s_mov_b32 s19, 0x20000")
    A(f"    s_mov_b32 s22, {32*GBYTES}")
    A(f"    s_mov_b32 s23, 0x20000")
    A(f"    s_mov_b32 s26, 0x100000")
    A(f"    s_mov_b32 s27, 0x20000")
    A(f"    s_mov_b32 s30, 896")
    A(f"    s_mov_b32 s31, 0x20000")
    A(f"    s_mov_b32 s34, 896")
    A(f"    s_mov_b32 s35, 0x20000")
    A(f"    s_mul_i32 s3, s41, 28")
    A(f"    v_lshl_add_u32 v8, v0, 1, s3")
    A(f"    s_lshl_b32 s3, s41, 7")
    A(f"    s_add_u32 s3, s3, 0x80000")
    if K > 1 and PRIO:
        A(f"    s_cmp_lg_u32 s37, 0")
        A(f"    s_cbranch_scc1 L_noprio")
        A(f"    s_setprio 3")
        A(f"L_noprio:")
    A("    s_waitcnt lgkmcnt(0)")
    A("    s_mov_b32 s16, s4")
    A("    s_mov_b32 s17, s5")
    A("    s_load_dwordx2 s[42:43], s[12:13], s3  ; epoch")
    if K > 1 and ORDER:
        for k in range(1, K):
            A(f"    s_cmp_lt_u32 s37, {k}")
            A(f"    s_cbranch_scc1 L_issue")
            A(f"    s_barrier")
        A("L_issue:")
    for c in range(14):
        if c == 0:
            so = "0"
        else:
            A(f"    s_mov_b32 s3, {c*131072}")
            so = "s3"
        for j in range(LPC):
            i = c * LPC + j
            r = D0 + 4 * i
            off = f" offset:{j*1024}" if j else ""
            A(f"    buffer_load_dwordx4 v[{r}:{r+3}], v1, s[16:19], {so} offen{off} {LDNT}".rstrip())
    if K > 1 and ORDER:
        for k in range(K - 1):
            A(f"    s_cmp_gt_u32 s37, {k}")
            A(f"    s_cbranch_scc1 L_skipb{k}")
            A(f"    s_barrier")
            A(f"L_skipb{k}:")
    A("    s_mov_b32 s28, s6")
    A("    s_mov_b32 s29, s7")
    A("    s_mov_b32 s32, s8")
    A("    s_mov_b32 s33, s9")
    A("    s_mov_b32 s20, s10")
    A("    s_mov_b32 s21, s11")
    A("    s_mov_b32 s24, s12")
    A("    s_mov_b32 s25, s13")
    A("    buffer_load_ushort v2, v8, s[28:31], 0 offen")
    A("    buffer_load_ushort v3, v8, s[32:35], 0 offen")
    for r in range(8, 16):
        A(f"    v_mov_b32 v{r}, 0")
    for i in range(NL):
        A(f"    s_waitcnt vmcnt({NL - 1 - i + 2})")
        if i == 0:
            A(f"    v_readfirstlane_b32 s46, v{D0}")
            A(f"    s_lshl_b32 s46, s46, 16                ; pivot")
            if STAMP:
                A("    s_memrealtime s[82:83]")
        r = D0 + 4 * i
        for q in range(4):
            A(f"    v_lshlrev_b32 v{16+2*q}, 16, v{r+q}")
            A(f"    v_and_b32 v{17+2*q}, s40, v{r+q}")
        for q in range(4):
            A(f"    v_pk_add_f32 v[{16+2*q}:{17+2*q}], v[{16+2*q}:{17+2*q}], s[46:47] op_sel_hi:[1,0] neg_lo:[0,1] neg_hi:[0,1]")
        for q in range(4):
            a1 = 8 + 2 * (q & 1); a2 = 12 + 2 * (q & 1)
            A(f"    v_pk_add_f32 v[{a1}:{a1+1}], v[{a1}:{a1+1}], v[{16+2*q}:{17+2*q}]")
            A(f"    v_pk_fma_f32 v[{a2}:{a2+1}], v[{16+2*q}:{17+2*q}], v[{16+2*q}:{17+2*q}], v[{a2}:{a2+1}]")
    if STAMP:
        A("    s_memrealtime s[84:85]")
    A("    v_pk_add_f32 v[8:9], v[8:9], v[10:11]")
    A("    v_pk_add_f32 v[12:13], v[12:13], v[14:15]")
    A("    s_waitcnt lgkmcnt(0)")
    A("    s_mul_i32 s44, s42, 0x9E3779B1")
    A("    v_add_f32 v8, v8, v9")
    A("    v_add_f32 v12, v12, v13")
    A("    s_add_u32 s44, s44, 0x7F4A7C15         ; tag1")
    A("    s_mul_i32 s45, s43, 0x85EBCA6D")
    A("    s_add_u32 s45, s45, 0x2545F491         ; tag2")
    def reduce2(a, b):
        for m in ["row_shr:1", "row_shr:2", "row_shr:4", "row_shr:8"]:
            A(f"    s_nop 0")
            A(f"    v_add_f32_dpp v{a}, v{a}, v{a} {m} row_mask:0xf bank_mask:0xf bound_ctrl:0" )
            if b is not None: A(f"    v_add_f32_dpp v{b}, v{b}, v{b} {m} row_mask:0xf bank_mask:0xf bound_ctrl:0")
            else: A("    s_nop 0")
        for m, rm in [("row_bcast:15", "0xa"), ("row_bcast:31", "0xc")]:
            A(f"    s_nop 0")
            A(f"    v_add_f32_dpp v{a}, v{a}, v{a} {m} row_mask:{rm} bank_mask:0xf")
            if b is not None: A(f"    v_add_f32_dpp v{b}, v{b}, v{b} {m} row_mask:{rm} bank_mask:0xf")
            else: A("    s_nop 0")
    A("    s_nop 0")
    reduce2(8, 12)
    A(f"    v_mul_f32 v9, {hex(f2u(1.0/nw_elems))}, v8       ; S1/n")
    A(f"    v_fma_f32 v6, -v9, v8, v12             ; M2 = S2 - S1^2/n")
    A(f"    v_add_f32 v4, s46, v9                  ; mean")
    A(f"    v_mov_b32 v5, s44")
    A(f"    v_mov_b32 v7, s45")
    A(f"    s_mul_i32 s3, s41, {NS*16}")
    A(f"    s_lshl_b32 s39, s38, 4")
    A(f"    s_add_u32 s39, s39, s3")
    A(f"    v_mov_b32 v9, s39")
    A(f"    v_lshl_add_u32 v10, v0, 4, s3")
    A(f"    s_mov_b64 exec, 0x8000000000000000" if False else "    s_mov_b32 exec_lo, 0")
    A(f"    s_mov_b32 exec_hi, 0x80000000")
    A(f"    buffer_store_dwordx4 v[4:7], v9, s[24:27], 0 offen sc1")
    A(f"    s_mov_b64 exec, -1")
    if NS < 64:
        A(f"    s_mov_b32 exec_hi, 0")
    A("    s_mov_b32 s94, 20000")
    A("L_poll:")
    A(f"    buffer_load_dwordx4 v[4:7], v10, s[24:27], 0 offen sc1")
    if NS == 128:
        A(f"    buffer_load_dwordx4 v[16:19], v10, s[24:27], 0 offen offset:1024 sc1")
    A("    s_waitcnt vmcnt(0)")
    A("    v_cmp_eq_u32 vcc, s44, v5")
    A("    v_cmp_eq_u32 s[76:77], s45, v7")
    if NS == 128:
        A("    v_cmp_eq_u32 s[78:79], s44, v17")
        A("    s_and_b64 vcc, vcc, s[76:77]")
        A("    v_cmp_eq_u32 s[76:77], s45, v19")
        A("    s_and_b64 vcc, vcc, s[78:79]")
    A("    s_and_b64 vcc, vcc, s[76:77]")
    A("    s_cmp_eq_u64 vcc, exec")
    A("    s_cbranch_scc1 L_ready")
    if SLEEP: A(f"    s_sleep {SLEEP}")
    A("    s_sub_u32 s94, s94, 1")
    A("    s_cmp_lg_u32 s94, 0")
    A("    s_cbranch_scc1 L_poll")
    A("L_ready:")
    if STAMP:
        A("    s_memrealtime s[86:87]")
    if NS < 64:
        A("    s_mov_b64 exec, -1")
        A("    v_cmp_gt_u32 vcc, 32, v0")
        A("    s_nop 1")
        A("    v_cndmask_b32 v4, 0, v4, vcc")
        A("    v_cndmask_b32 v6, 0, v6, vcc")
    A(f"    s_and_b32 s3, s38, {S-1}")
    A(f"    s_cmp_lg_u32 s3, 0")
    A(f"    s_cbranch_scc1 L_noepoch")
    A(f"    s_lshl_b32 s3, s41, 7")
    A(f"    s_add_u32 s3, s3, 0x80000")
    A(f"    v_mov_b32 v20, s44")
    A(f"    v_mov_b32 v21, s45")
    A(f"    v_mov_b32 v22, s3")
    A(f"    s_mov_b64 exec, 1")
    A(f"    buffer_store_dwordx2 v[20:21], v22, s[24:27], 0 offen sc1")
    A(f"    s_mov_b64 exec, -1")
    A("L_noepoch:")
    if NS == 128:
        A("    v_add_f32 v8, v4, v16")
    else:
        A("    v_mov_b32 v8, v4")
    A("    s_nop 0")
    reduce2(8, None)
    A(f"    v_mul_f32 v8, {hex(f2u(1.0/NS))}, v8")
    A("    s_nop 0")
    A("    v_readlane_b32 s47, v8, 63")
    A(f"    s_mov_b32 s3, {hex(f2u(float(nw_elems)))}")
    A("    s_nop 0")
    A("    v_subrev_f32 v4, s47, v4")
    if NS < 64:
        A("    v_cndmask_b32 v4, 0, v4, vcc")
    A("    v_mul_f32 v5, s3, v4")
    A("    v_fma_f32 v8, v5, v4, v6               ; M2_i + n d^2")
    if NS == 128:
        A("    v_subrev_f32 v16, s47, v16")
        A("    v_mul_f32 v5, s3, v16")
        A("    v_add_f32 v8, v8, v18")
        A("    v_fma_f32 v8, v5, v16, v8")
    A("    s_nop 0")
    reduce2(8, None)
    A(f"    v_mul_f32 v8, {hex(f2u(1.0/N))}, v8  ; var")
    A("    v_max_f32 v8, 0, v8")
    A("    v_mov_b32 v9, s47")
    if MIMIC:
        A("    v_cvt_pk_bf16_f32 v10, v9, v9")
        A("    v_lshlrev_b32 v10, 16, v10")
        A("    v_sub_f32 v11, v9, v10")
        A("    v_fma_f32 v8, v11, v11, v8             ; E[(x-mu_b)^2]")
        A("    v_mov_b32 v9, v10")
        A("    v_cvt_pk_bf16_f32 v8, v8, v8")
        A("    v_lshlrev_b32 v8, 16, v8")
        A(f"    v_add_f32 v8, {hex(f2u(1e-5))}, v8")
        A("    v_cvt_pk_bf16_f32 v8, v8, v8")
        A("    v_lshlrev_b32 v8, 16, v8")
        A("    v_sqrt_f32 v8, v8")
        A("    s_nop 0")
        A("    v_cvt_pk_bf16_f32 v8, v8, v8")
        A("    v_lshlrev_b32 v8, 16, v8")
        A("    v_rcp_f32 v8, v8")
    else:
        A(f"    v_add_f32 v8, {hex(f2u(1e-5))}, v8")
        A("    v_rsq_f32 v8, v8")
    A("    s_nop 0")
    A("    v_readlane_b32 s46, v8, 63             ; rstd")
    A("    v_lshlrev_b32 v2, 16, v2")
    A("    v_lshlrev_b32 v3, 16, v3")
    A("    v_mul_f32 v2, s46, v2                  ; scale_c")
    A("    v_fma_f32 v3, -v9, v2, v3              ; shift_c")
    A("    s_nop 0")
    for c in range(14):
        A(f"    v_readlane_b32 s{48+2*c}, v2, {c}")
        A(f"    v_readlane_b32 s{49+2*c}, v3, {c}")
    for c in range(14):
        if c == 0:
            so = "0"
        else:
            A(f"    s_mov_b32 s3, {c*131072}")
            so = "s3"
        for j in range(LPC):
            i = c * LPC + j
            r = D0 + 4 * i
            t = 8 + 8 * (i & 1)
            for q in range(4):
                A(f"    v_lshlrev_b32 v{t+2*q}, 16, v{r+q}")
                A(f"    v_and_b32 v{t+1+2*q}, s40, v{r+q}")
            for q in range(4):
                A(f"    v_pk_fma_f32 v[{t+2*q}:{t+1+2*q}], v[{t+2*q}:{t+1+2*q}], s[{48+2*c}:{49+2*c}], s[{48+2*c}:{49+2*c}] op_sel:[0,0,1] op_sel_hi:[1,0,1]")
            for q in range(4):
                A(f"    v_cvt_pk_bf16_f32 v{r+q}, v{t+2*q}, v{t+1+2*q}")
            off = f" offset:{j*1024}" if j else ""
            A(f"    buffer_store_dwordx4 v[{r}:{r+3}], v1, s[20:23], {so} offen{off} {STNT}".rstrip())
    if STAMP:
        A("    s_memrealtime s[88:89]")
        A("    s_waitcnt vmcnt(0)")
        A("    s_memrealtime s[90:91]")
        A("    s_getreg_b32 s92, hwreg(HW_REG_HW_ID)")
        A("    s_getreg_b32 s93, hwreg(HW_REG_XCC_ID)")
        A(f"    s_mul_i32 s3, s2, {NW}")
        A(f"    s_add_u32 s3, s3, s36")
        A(f"    s_lshl_b32 s3, s3, 6")
        A(f"    s_add_u32 s3, s3, 0x90000")
        A(f"    v_mov_b32 v8, s3")
        A("    s_waitcnt lgkmcnt(0)")
        for k, sr in enumerate([80, 82, 84, 86, 88, 90, 92, 93]):
            A(f"    v_mov_b32 v{12+k}, s{sr}")
        A("    s_mov_b64 exec, 1")
        A("    s_mov_b32 s26, 0x1000000")
        A("    buffer_store_dwordx4 v[12:15], v8, s[24:27], 0 offen")
        A("    buffer_store_dwordx4 v[16:19], v8, s[24:27], 0 offen offset:16")
    A("L_end:")
    A("    s_endpgm")
    A('.section .rodata,"a"')
    A(".p2align 6")
    nv = max(nvgpr, VGPRPAD)
    A(f".amdhsa_kernel {name}_kernel")
    A(f"  .amdhsa_next_free_vgpr {nv}")
    A(f"  .amdhsa_next_free_sgpr 96")
    A(f"  .amdhsa_accum_offset {(nv+3)//4*4}")
    A("  .amdhsa_group_segment_fixed_size 0")
    A("  .amdhsa_kernarg_size 48")
    A("  .amdhsa_user_sgpr_count 2")
    A("  .amdhsa_user_sgpr_kernarg_segment_ptr 1")
    A("  .amdhsa_system_sgpr_workgroup_id_x 1")
    A("  .amdhsa_float_denorm_mode_32 3")
    A(".end_amdhsa_kernel")
    return "\n".join(L) + "\n"

if __name__ == "__main__":
    kw = {}
    out = None
    for a in sys.argv[1:]:
        k, v = a.split("=", 1)
        if k == "out": out = v; continue
        try: v = int(v)
        except ValueError: pass
        kw[k] = v
    s = gen(**kw)
    if out: open(out, "w").write(s)
    else: sys.stdout.write(s)
```

```python
import sys, struct
def f2u(f): return struct.unpack('<I', struct.pack('<f', f))[0]

def gen(W=4, SW=0, LDNT="nt", STNT="sc0 sc1", STAMP=0, SLEEP=1, RB=0, RBPAR=0, XI=0, NOPOLL=0, SPRIO=3,
        name="standalone__groupnorm__prompt", SPINMAX=20000, LSLEEP=1, W2=0, MAP=0, LOC=0, LA=2, LB=2):
    L = []; A = L.append
    GB = 14 * 131072
    N = 14 * 65536
    D0 = 32
    maxT = 2 * (14 + RB)
    nvgpr = D0 + 4 * maxT
    hdr = open('standalone__groupnorm__prompt.s.ref').read().split('\n')
    for ln in hdr:
        if ln.startswith('; @launch'): break
        A(ln)
    A(f"; @launch grid=(256,1,1) block=(576,1,1) lds=1024")
    A('.amdgcn_target "amdgcn-amd-amdhsa--gfx950"')
    A(".text"); A(f".globl {name}_kernel"); A(".p2align 8"); A(f".type {name}_kernel,@function")
    A(f"{name}_kernel:")
    A("    s_cmp_ge_u32 s2, 256")
    A("    s_cbranch_scc1 L_end")
    A("    s_load_dwordx8 s[4:11], s[0:1], 0      ; x, g, b, out")
    A("    s_load_dwordx2 s[12:13], s[0:1], 40    ; ws")
    if STAMP: A("    s_memrealtime s[80:81]")
    A("    v_lshrrev_b32 v1, 6, v0")
    A("    v_and_b32 v0, 63, v0                   ; lane")
    A("    v_readfirstlane_b32 s36, v1")
    if MAP == 0:
        A("    s_lshr_b32 s41, s2, 4")
        A("    s_and_b32 s38, s2, 15                  ; member")
    elif MAP == 1:
        A("    s_and_b32 s41, s2, 7")
        A("    s_lshl_b32 s41, s41, 1")
        A("    s_lshr_b32 s3, s2, 7")
        A("    s_add_u32 s41, s41, s3                 ; q")
        A("    s_bfe_u32 s38, s2, 0x40003             ; member")
    elif MAP == 2:
        A("    s_bfe_u32 s41, s2, 0x20001")
        A("    s_lshl_b32 s41, s41, 2")
        A("    s_lshr_b32 s3, s2, 6")
        A("    s_add_u32 s41, s41, s3                 ; q")
        A("    s_bfe_u32 s38, s2, 0x30003")
        A("    s_lshl_b32 s38, s38, 1")
        A("    s_and_b32 s3, s2, 1")
        A("    s_or_b32 s38, s38, s3                  ; member")
    A("    s_cmp_eq_u32 s36, 8")
    A("    s_cbranch_scc1 L_service")
    A("    s_mov_b32 s40, 0xffff0000")
    A(f"    s_mul_i32 s39, s41, {GB}")
    if LOC:
        A("    s_and_b32 s3, s2, 3")
        A("    s_bfe_u32 s95, s2, 0x10003")
        A("    s_lshl_b32 s95, s95, 2")
        A("    s_or_b32 s3, s3, s95                   ; rank")
        A("    s_bfe_u32 s95, s2, 0x10002             ; h")
        A("    s_xor_b32 s37, s95, s2")
        A("    s_and_b32 s15, s37, 1")
        A("    s_lshl_b32 s15, s15, 13")
        A("    s_lshl_b32 s3, s3, 14")
        A("    s_mul_i32 s14, s41, 14")
    else:
        A("    s_and_b32 s3, s38, 14")
        A("    s_lshl_b32 s3, s3, 13")
    A("    s_add_u32 s39, s39, s3")
    A("    s_lshl_b32 s3, s36, 10")
    A("    s_add_u32 s39, s39, s3")
    A("    v_lshl_add_u32 v1, v0, 4, s39")
    A(f"    s_mov_b32 s18, {32*GB}")
    A("    s_mov_b32 s19, 0x20000")
    A(f"    s_mov_b32 s22, {32*GB}")
    A("    s_mov_b32 s23, 0x20000")
    if LOC:
        paths = [None]
    elif RB == 0:
        A("    s_and_b32 s3, s38, 1")
        A("    s_lshl_b32 s3, s3, 13")
        A("    v_add_u32 v1, s3, v1")
        paths = [None]
    else:
        paths = [0, 1]
        A("    s_bitcmp1_b32 s38, 0")
        A("    s_cbranch_scc1 L_data1")
    def data_path(par):
        sfx = "" if par is None else str(par)
        if par is None:
            tl = [(c, 0) for c in range(14)]
        else:
            X = [7, 3, 11][:RB]
            heavy = (par == RBPAR)
            tl = []
            for c in range(14):
                if c in X:
                    if heavy: tl += [(c, par), (c, 1 - par)]
                else:
                    tl.append((c, par))
        Tc = len(tl); T = 2 * Tc
        tiles = [(0, c, h) for c, h in tl] + [(1, c, h) for c, h in tl]
        nw = Tc * 512
        pend = []
        def wait_for(op):
            idx = pend.index(op); n = len(pend) - 1 - idx
            A(f"    s_waitcnt vmcnt({n})")
            del pend[:idx + 1]
        def soff(i):
            k, c, h = tiles[i]
            return k * 16 * GB + c * 131072 + h * 8192
        def so(i):
            if LOC:
                k, c, h = tiles[i]
                pol = (LA, LB)[k]
                if pol == 2:
                    A(f"    s_add_u32 s3, s15, {soff(i)}")
                else:
                    A(f"    s_add_u32 s3, s14, {c + 224*k}")
                    A(f"    s_bfe_u32 s3, s3, 0x10004")
                    A(f"    s_xor_b32 s3, s3, s95")
                    if pol: A(f"    s_xor_b32 s3, s3, 1")
                    A(f"    s_lshl_b32 s3, s3, 13")
                    A(f"    s_add_u32 s3, s3, {soff(i)}")
                return "s3"
            if soff(i) == 0: return "0"
            A(f"    s_mov_b32 s3, {soff(i)}")
            return "s3"
        def ld(i):
            r = D0 + 4 * i; o = so(i)
            A(f"    buffer_load_dwordx4 v[{r}:{r+3}], v1, s[16:19], {o} offen {LDNT}".rstrip()); pend.append(('L', i))
        def stats(i):
            r = D0 + 4 * i
            if i % Tc == 0:
                A(f"    v_readfirstlane_b32 s46, v{r}")
                for z in range(8, 16): A(f"    v_mov_b32 v{z}, 0")
                A(f"    s_lshl_b32 s46, s46, 16                ; pivot")
            for q in range(4):
                A(f"    v_lshlrev_b32 v{16+2*q}, 16, v{r+q}")
                A(f"    v_and_b32 v{17+2*q}, s40, v{r+q}")
            for q in range(4):
                A(f"    v_pk_add_f32 v[{16+2*q}:{17+2*q}], v[{16+2*q}:{17+2*q}], s[46:47] op_sel_hi:[1,0] neg_lo:[0,1] neg_hi:[0,1]")
            for q in range(4):
                a1 = 8 + 2 * (q & 1); a2 = 12 + 2 * (q & 1)
                A(f"    v_pk_add_f32 v[{a1}:{a1+1}], v[{a1}:{a1+1}], v[{16+2*q}:{17+2*q}]")
                A(f"    v_pk_fma_f32 v[{a2}:{a2+1}], v[{16+2*q}:{17+2*q}], v[{16+2*q}:{17+2*q}], v[{a2}:{a2+1}]")
        def post(k):
            A("    v_pk_add_f32 v[8:9], v[8:9], v[10:11]")
            A("    v_pk_add_f32 v[12:13], v[12:13], v[14:15]")
            A("    s_lshl_b32 s3, s36, 3")
            A("    v_add_f32 v8, v8, v9")
            A("    v_add_f32 v12, v12, v13")
            A(f"    v_mov_b32 v4, s3")
            reduce2(8, 12)
            A(f"    v_mul_f32 v9, {hex(f2u(1.0/nw))}, v8")
            A(f"    v_mov_b32 v5, 1")
            A(f"    v_fma_f32 v7, -v9, v8, v12             ; M2")
            A(f"    v_add_f32 v6, s46, v9                  ; mean")
            A(f"    v_mov_b32 v8, 0")
            A("    s_mov_b32 exec_lo, 0")
            A("    s_mov_b32 exec_hi, 0x80000000")
            A(f"    ds_write_b64 v4, v[6:7] offset:{k*64}")
            A(f"    ds_add_u32 v8, v5 offset:{128+4*k}")
            A("    s_mov_b64 exec, -1")
        lastc = [None]
        def norm_store(i):
            k, c, h = tiles[i]
            r = D0 + 4 * i
            t = 16 + 8 * (i & 1)
            sp = 48 + 2 * (i & 1)
            A(f"    v_readlane_b32 s{sp}, v2, {c}")
            A(f"    v_readlane_b32 s{sp+1}, v3, {c}")
            for q in range(4):
                A(f"    v_lshlrev_b32 v{t+2*q}, 16, v{r+q}")
                A(f"    v_and_b32 v{t+1+2*q}, s40, v{r+q}")
            for q in range(4):
                A(f"    v_pk_fma_f32 v[{t+2*q}:{t+1+2*q}], v[{t+2*q}:{t+1+2*q}], s[{sp}:{sp+1}], s[{sp}:{sp+1}] op_sel:[0,0,1] op_sel_hi:[1,0,1]")
            for q in range(4):
                A(f"    v_cvt_pk_bf16_f32 v{r+q}, v{t+2*q}, v{t+1+2*q}")
            o = so(i)
            st = [p for p in pend if p[0] == 'S']
            if SW and len(st) >= SW: wait_for(st[0])
            A(f"    buffer_store_dwordx4 v[{r}:{r+3}], v1, s[20:23], {o} offen {STNT}".rstrip()); pend.append(('S', i))
        def get_scale(k):
            A("    s_barrier")
            A(f"    ds_read_b64 v[2:3], v0 offset:{256+128*k}")
            A("    s_waitcnt lgkmcnt(0)")
        A("    s_waitcnt lgkmcnt(0)")
        A("    s_mov_b32 s16, s4")
        A("    s_mov_b32 s17, s5")
        nxt = 0
        for i in range(W): ld(i); nxt += 1
        A("    s_mov_b32 s20, s10")
        A("    s_mov_b32 s21, s11")
        A("    v_lshlrev_b32 v0, 3, v0                ; lane*8")
        A("    s_barrier")
        done = 0
        for i in range(T):
            wait_for(('L', i))
            if STAMP and i == 0: A("    s_memrealtime s[82:83]")
            win = W2 if (W2 and i >= Tc - W) else W
            while nxt < T and nxt <= i + win: ld(nxt); nxt += 1
            if XI and i == T - XI:
                get_scale(0)
            stats(i)
            if i == Tc - 1: post(0)
            if i == T - 1: post(1)
            if XI and i >= T - XI:
                norm_store(done); done += 1
        if STAMP: A("    s_memrealtime s[84:85]")
        if not XI: get_scale(0)
        if STAMP: A("    s_memrealtime s[86:87]")
        while done < Tc: norm_store(done); done += 1
        get_scale(1)
        if STAMP: A("    s_memrealtime s[88:89]")
        while done < T: norm_store(done); done += 1
        if STAMP: A("    s_branch L_stamp")
        else: A("    s_endpgm")
    def reduce2(a, b, steps=("row_shr:1", "row_shr:2", "row_shr:4", "row_shr:8", "B15", "B31")):
        for m in steps:
            if m == "B15": mm = "row_bcast:15 row_mask:0xa bank_mask:0xf"
            elif m == "B31": mm = "row_bcast:31 row_mask:0xc bank_mask:0xf"
            else: mm = m + " row_mask:0xf bank_mask:0xf bound_ctrl:0"
            A("    s_nop 0" if b is not None else "    s_nop 1")
            A(f"    v_add_f32_dpp v{a}, v{a}, v{a} {mm}")
            if b is not None: A(f"    v_add_f32_dpp v{b}, v{b}, v{b} {mm}")
    for par in paths:
        if par == 1: A("L_data1:")
        data_path(par)
    A("L_service:")
    if SPRIO: A(f"    s_setprio {SPRIO}")
    A("    v_mov_b32 v4, 0")
    A("    v_mov_b32 v5, 0")
    A("    ds_write_b64 v4, v[4:5] offset:128")
    A("    s_mov_b32 s26, 0x100000")
    A("    s_mov_b32 s27, 0x20000")
    A("    s_mov_b32 s30, 896")
    A("    s_mov_b32 s31, 0x20000")
    A("    s_mov_b32 s34, 896")
    A("    s_mov_b32 s35, 0x20000")
    A("    s_mul_i32 s3, s41, 28")
    A("    v_lshl_add_u32 v8, v0, 1, s3")
    A("    s_lshl_b32 s14, s41, 7")
    A("    s_add_u32 s14, s14, 0x80000")
    A("    s_waitcnt lgkmcnt(0)")
    A("    s_barrier")
    A("    s_load_dwordx2 s[42:43], s[12:13], s14 ; epoch")
    for a, b in [(28, 6), (29, 7), (32, 8), (33, 9), (24, 12), (25, 13)]: A(f"    s_mov_b32 s{a}, s{b}")
    A("    buffer_load_ushort v20, v8, s[28:31], 0 offen")
    A("    buffer_load_ushort v21, v8, s[32:35], 0 offen")
    A("    buffer_load_ushort v22, v8, s[28:31], 0 offen offset:448")
    A("    buffer_load_ushort v23, v8, s[32:35], 0 offen offset:448")
    A("    v_lshlrev_b32 v1, 3, v0                ; lane*8")
    A("    s_lshl_b32 s3, s41, 8")
    A("    v_lshl_add_u32 v10, v0, 4, s3")
    A("    s_lshl_b32 s15, s38, 4")
    A("    s_add_u32 s15, s15, s3")
    A("    v_mov_b32 v11, s15")
    nwv = [(14 + RB) * 512 if p == RBPAR else (14 - RB) * 512 for p in (0, 1)] if RB else [14 * 512] * 2
    A(f"    v_mov_b32 v24, {hex(f2u(8.0*nwv[0]))}")
    if RB:
        A(f"    v_mov_b32 v25, {hex(f2u(8.0*nwv[1]))}")
        A("    v_and_b32 v26, 1, v0")
        A("    v_cmp_eq_u32 vcc, 1, v26")
        A("    s_bitcmp1_b32 s38, 0")
        A(f"    s_mov_b32 s39, {hex(f2u(float(nwv[0])))}")
        A(f"    s_cselect_b32 s39, {hex(f2u(float(nwv[1])))}, s39")
        A("    v_cndmask_b32 v24, v24, v25, vcc")
    else:
        A(f"    s_mov_b32 s39, {hex(f2u(float(nwv[0])))}")
    A("    s_waitcnt lgkmcnt(0)")
    A("    s_mul_i32 s44, s42, 0x9E3779B1")
    A("    s_add_u32 s44, s44, 0x7F4A7C15         ; tag1")
    A("    s_mul_i32 s45, s43, 0x85EBCA6D")
    A("    s_add_u32 s45, s45, 0x2545F491         ; tag2")
    for k in range(2):
        A(f"L_wait{k}:")
        A(f"    ds_read_b32 v6, v4 offset:{128+4*k}")
        A("    s_waitcnt lgkmcnt(0)")
        A("    v_readfirstlane_b32 s3, v6")
        A("    s_cmp_eq_u32 s3, 8")
        A(f"    s_cbranch_scc1 L_got{k}")
        A(f"    s_sleep {LSLEEP}")
        A(f"    s_branch L_wait{k}")
        A(f"L_got{k}:")
        if STAMP: A(f"    s_memrealtime s[{82+4*k}:{83+4*k}]")
        A("    s_mov_b64 exec, 0xff")
        A(f"    ds_read_b64 v[6:7], v1 offset:{64*k}")
        A("    s_waitcnt lgkmcnt(0)")
        A("    v_mov_b32 v8, v6")
        reduce2(8, None, ("row_shr:1", "row_shr:2", "row_shr:4"))
        A("    v_mul_f32 v8, 0.125, v8" if False else f"    v_mul_f32 v8, {hex(f2u(0.125))}, v8")
        A("    s_nop 0")
        A("    v_readlane_b32 s47, v8, 7")
        A("    s_nop 1")
        A("    v_subrev_f32 v6, s47, v6")
        A("    v_mul_f32 v9, s39, v6")
        A("    v_fma_f32 v14, v9, v6, v7")
        reduce2(14, None, ("row_shr:1", "row_shr:2", "row_shr:4"))
        A("    v_mov_b32 v12, s47")
        A("    v_mov_b32 v13, s44")
        A("    v_mov_b32 v15, s45")
        A("    s_mov_b64 exec, 0x80")
        if not NOPOLL: A(f"    buffer_store_dwordx4 v[12:15], v11, s[24:27], 0 offen offset:{0} sc1" if k == 0 else
                         f"    buffer_store_dwordx4 v[12:15], v11, s[24:27], s37 offen sc1")
        A("    s_mov_b64 exec, 0xffff")
        A(f"    s_mov_b32 s94, {SPINMAX}")
        A(f"L_poll{k}:")
        if NOPOLL:
            A("    s_waitcnt vmcnt(0)")
        else:
            A(f"    buffer_load_dwordx4 v[16:19], v10, s[24:27], {'0' if k == 0 else 's37'} offen sc1")
            A("    s_waitcnt vmcnt(0)")
            A("    v_cmp_eq_u32 vcc, s44, v17")
            A("    v_cmp_eq_u32 s[76:77], s45, v19")
            A("    s_and_b64 vcc, vcc, s[76:77]")
            A("    s_cmp_eq_u64 vcc, exec")
            A(f"    s_cbranch_scc1 L_ready{k}")
            if SLEEP: A(f"    s_sleep {SLEEP}")
            A("    s_sub_u32 s94, s94, 1")
            A("    s_cmp_lg_u32 s94, 0")
            A(f"    s_cbranch_scc1 L_poll{k}")
        A(f"L_ready{k}:")
        if STAMP: A(f"    s_memrealtime s[{84+4*k}:{85+4*k}]")
        A("    v_mul_f32 v8, v24, v16")
        reduce2(8, None, ("row_shr:1", "row_shr:2", "row_shr:4", "row_shr:8"))
        A(f"    v_mul_f32 v8, {hex(f2u(1.0/N))}, v8")
        A("    s_nop 0")
        A("    v_readlane_b32 s47, v8, 15")
        A("    s_nop 1")
        A("    v_subrev_f32 v16, s47, v16")
        A("    v_mul_f32 v9, v24, v16")
        A("    v_fma_f32 v8, v9, v16, v18")
        reduce2(8, None, ("row_shr:1", "row_shr:2", "row_shr:4", "row_shr:8"))
        A(f"    v_mul_f32 v8, {hex(f2u(1.0/N))}, v8  ; var")
        A("    v_mov_b32 v9, s47")
        A("    v_max_f32 v8, 0, v8")
        A("    v_cvt_pk_bf16_f32 v12, v9, v9")
        A("    v_lshlrev_b32 v12, 16, v12")
        A("    v_sub_f32 v13, v9, v12")
        A("    v_fma_f32 v8, v13, v13, v8             ; E[(x-mu_b)^2]")
        A("    v_cvt_pk_bf16_f32 v8, v8, v8")
        A("    v_lshlrev_b32 v8, 16, v8")
        A(f"    v_add_f32 v8, {hex(f2u(1e-5))}, v8")
        A("    v_cvt_pk_bf16_f32 v8, v8, v8")
        A("    v_lshlrev_b32 v8, 16, v8")
        A("    v_sqrt_f32 v8, v8")
        A("    s_nop 0")
        A("    v_cvt_pk_bf16_f32 v8, v8, v8")
        A("    v_lshlrev_b32 v8, 16, v8")
        A("    v_rcp_f32 v8, v8")
        A("    s_nop 0")
        A("    v_readlane_b32 s46, v8, 15             ; rstd")
        A(f"    v_lshlrev_b32 v6, 16, v{20+2*k}")
        A(f"    v_lshlrev_b32 v7, 16, v{21+2*k}")
        A("    v_mul_f32 v6, s46, v6                  ; scale_c")
        A("    v_fma_f32 v7, -v12, v6, v7             ; shift_c")
        A(f"    ds_write_b64 v1, v[6:7] offset:{256+128*k}")
        if k == 0:
            A("    s_mov_b32 s37, 4096")
        A("    s_mov_b64 exec, -1")
        A("    s_waitcnt lgkmcnt(0)")
        A("    s_barrier")
    if not NOPOLL:
        A("    v_mov_b32 v6, s44")
        A("    v_mov_b32 v7, s45")
        A("    v_mov_b32 v8, s14")
        A("    s_mov_b64 exec, 1")
        A("    buffer_store_dwordx2 v[6:7], v8, s[24:27], 0 offen sc1")
    if STAMP:
        A("L_stamp:")
        A("    s_mov_b64 exec, -1")
        A("    s_waitcnt vmcnt(0)")
        A("    s_memrealtime s[90:91]")
        A("    s_getreg_b32 s92, hwreg(HW_REG_HW_ID)")
        A("    s_getreg_b32 s93, hwreg(HW_REG_XCC_ID)")
        A("    s_mov_b32 s24, s12")
        A("    s_mov_b32 s25, s13")
        A("    s_mov_b32 s26, 0x1000000")
        A("    s_mov_b32 s27, 0x20000")
        A("    s_mul_i32 s3, s2, 9")
        A("    s_add_u32 s3, s3, s36")
        A("    s_lshl_b32 s3, s3, 6")
        A("    s_add_u32 s3, s3, 0x90000")
        A("    v_mov_b32 v8, s3")
        A("    s_waitcnt lgkmcnt(0)")
        for k, sr in enumerate([80, 82, 84, 86, 88, 90, 92, 93]): A(f"    v_mov_b32 v{12+k}, s{sr}")
        A("    s_mov_b64 exec, 1")
        A("    buffer_store_dwordx4 v[12:15], v8, s[24:27], 0 offen")
        A("    buffer_store_dwordx4 v[16:19], v8, s[24:27], 0 offen offset:16")
    A("L_end:")
    A("    s_endpgm")
    A('.section .rodata,"a"'); A(".p2align 6")
    A(f".amdhsa_kernel {name}_kernel")
    A(f"  .amdhsa_next_free_vgpr {nvgpr}")
    A(f"  .amdhsa_next_free_sgpr 96")
    A(f"  .amdhsa_accum_offset {(nvgpr+3)//4*4}")
    A("  .amdhsa_group_segment_fixed_size 0")
    A("  .amdhsa_kernarg_size 48")
    A("  .amdhsa_user_sgpr_count 2")
    A("  .amdhsa_user_sgpr_kernarg_segment_ptr 1")
    A("  .amdhsa_system_sgpr_workgroup_id_x 1")
    A("  .amdhsa_float_denorm_mode_32 3")
    A(".end_amdhsa_kernel")
    return "\n".join(L) + "\n"

if __name__ == "__main__":
    kw = {}; out = None
    for a in sys.argv[1:]:
        k, v = a.split("=", 1)
        if k == "out": out = v; continue
        try: v = int(v)
        except ValueError: pass
        kw[k] = v
    s = gen(**kw)
    if out: open(out, "w").write(s)
    else: sys.stdout.write(s)
```

```python
import sys, struct
def f2u(f): return struct.unpack('<I', struct.pack('<f', f))[0]

def gen(W=4, SW=0, LDNT="nt", STNT="sc0 sc1", STAMP=0, SLEEP=1, RB=0, RBPAR=0, XI=0, NOPOLL=0, SPRIO=3,
        name="standalone__groupnorm__prompt", SPINMAX=20000, LSLEEP=1, W2=0, MAP=0, LOC=0, LA=2, LB=2, PROBE=0, ALT=0):
    L = []; A = L.append
    GB = 14 * 131072
    N = 14 * 65536
    D0 = 32
    maxT = 2 * (14 + RB)
    nvgpr = D0 + 4 * maxT + (1 if ALT else 0)
    hdr = open('standalone__groupnorm__prompt.s.ref').read().split('\n')
    for ln in hdr:
        if ln.startswith('; @launch'): break
        A(ln)
    NWV = 11 if PROBE else 9
    A(f"; @launch grid=(256,1,1) block=({64*NWV},1,1) lds=1024")
    A('.amdgcn_target "amdgcn-amd-amdhsa--gfx950"')
    A(".text"); A(f".globl {name}_kernel"); A(".p2align 8"); A(f".type {name}_kernel,@function")
    A(f"{name}_kernel:")
    A("    s_cmp_ge_u32 s2, 256")
    A("    s_cbranch_scc1 L_end")
    A("    s_load_dwordx8 s[4:11], s[0:1], 0      ; x, g, b, out")
    A("    s_load_dwordx2 s[12:13], s[0:1], 40    ; ws")
    if STAMP: A("    s_memrealtime s[80:81]")
    A("    v_lshrrev_b32 v1, 6, v0")
    A("    v_and_b32 v0, 63, v0                   ; lane")
    A("    v_readfirstlane_b32 s36, v1")
    if MAP == 0:
        A("    s_lshr_b32 s41, s2, 4")
        A("    s_and_b32 s38, s2, 15                  ; member")
    elif MAP == 1:
        A("    s_and_b32 s41, s2, 7")
        A("    s_lshl_b32 s41, s41, 1")
        A("    s_lshr_b32 s3, s2, 7")
        A("    s_add_u32 s41, s41, s3                 ; q")
        A("    s_bfe_u32 s38, s2, 0x40003             ; member")
    elif MAP == 2:
        A("    s_bfe_u32 s41, s2, 0x20001")
        A("    s_lshl_b32 s41, s41, 2")
        A("    s_lshr_b32 s3, s2, 6")
        A("    s_add_u32 s41, s41, s3                 ; q")
        A("    s_bfe_u32 s38, s2, 0x30003")
        A("    s_lshl_b32 s38, s38, 1")
        A("    s_and_b32 s3, s2, 1")
        A("    s_or_b32 s38, s38, s3                  ; member")
    A("    s_cmp_eq_u32 s36, 8")
    A("    s_cbranch_scc1 L_service")
    if PROBE:
        A("    s_cmp_gt_u32 s36, 8")
        A("    s_cbranch_scc1 L_probe")
    A("    s_mov_b32 s40, 0xffff0000")
    A(f"    s_mul_i32 s39, s41, {GB}")
    if LOC:
        A("    s_and_b32 s3, s2, 3")
        A("    s_bfe_u32 s95, s2, 0x10003")
        A("    s_lshl_b32 s95, s95, 2")
        A("    s_or_b32 s3, s3, s95                   ; rank")
        A("    s_bfe_u32 s95, s2, 0x10002             ; h")
        A("    s_xor_b32 s37, s95, s2")
        A("    s_and_b32 s15, s37, 1")
        A("    s_lshl_b32 s15, s15, 13")
        A("    s_lshl_b32 s3, s3, 14")
        A("    s_mul_i32 s14, s41, 14")
    else:
        A("    s_and_b32 s3, s38, 14")
        A("    s_lshl_b32 s3, s3, 13")
    A("    s_add_u32 s39, s39, s3")
    A("    s_lshl_b32 s3, s36, 10")
    A("    s_add_u32 s39, s39, s3")
    A("    v_lshl_add_u32 v1, v0, 4, s39")
    A(f"    s_mov_b32 s18, {32*GB}")
    A("    s_mov_b32 s19, 0x20000")
    A(f"    s_mov_b32 s22, {32*GB}")
    A("    s_mov_b32 s23, 0x20000")
    if LOC:
        paths = [None]
    elif RB == 0:
        A("    s_and_b32 s3, s38, 1")
        A("    s_lshl_b32 s3, s3, 13")
        A("    v_add_u32 v1, s3, v1")
        if ALT: A(f"    v_xor_b32 v{nvgpr-1}, 0x2000, v1")
        paths = [None]
    else:
        paths = [0, 1]
        A("    s_bitcmp1_b32 s38, 0")
        A("    s_cbranch_scc1 L_data1")
    def data_path(par):
        sfx = "" if par is None else str(par)
        if par is None:
            tl = [(c, 0) for c in range(14)]
        else:
            X = [7, 3, 11][:RB]
            heavy = (par == RBPAR)
            tl = []
            for c in range(14):
                if c in X:
                    if heavy: tl += [(c, par), (c, 1 - par)]
                else:
                    tl.append((c, par))
        Tc = len(tl); T = 2 * Tc
        tiles = [(0, c, h) for c, h in tl] + [(1, c, h) for c, h in tl]
        nw = Tc * 512
        pend = []
        def wait_for(op):
            idx = pend.index(op); n = len(pend) - 1 - idx
            A(f"    s_waitcnt vmcnt({n})")
            del pend[:idx + 1]
        def va(i):
            return f"v{nvgpr-1}" if (ALT and (tiles[i][1] // ALT) & 1) else "v1"
        def soff(i):
            k, c, h = tiles[i]
            return k * 16 * GB + c * 131072 + h * 8192
        def so(i):
            if LOC:
                k, c, h = tiles[i]
                pol = (LA, LB)[k]
                if pol == 2:
                    A(f"    s_add_u32 s3, s15, {soff(i)}")
                else:
                    A(f"    s_add_u32 s3, s14, {c + 224*k}")
                    A(f"    s_bfe_u32 s3, s3, 0x10004")
                    A(f"    s_xor_b32 s3, s3, s95")
                    if pol: A(f"    s_xor_b32 s3, s3, 1")
                    A(f"    s_lshl_b32 s3, s3, 13")
                    A(f"    s_add_u32 s3, s3, {soff(i)}")
                return "s3"
            if soff(i) == 0: return "0"
            A(f"    s_mov_b32 s3, {soff(i)}")
            return "s3"
        def ld(i):
            r = D0 + 4 * i; o = so(i)
            A(f"    buffer_load_dwordx4 v[{r}:{r+3}], {va(i)}, s[16:19], {o} offen {LDNT}".rstrip()); pend.append(('L', i))
        def stats(i):
            r = D0 + 4 * i
            if i % Tc == 0:
                A(f"    v_readfirstlane_b32 s46, v{r}")
                for z in range(8, 16): A(f"    v_mov_b32 v{z}, 0")
                A(f"    s_lshl_b32 s46, s46, 16                ; pivot")
            for q in range(4):
                A(f"    v_lshlrev_b32 v{16+2*q}, 16, v{r+q}")
                A(f"    v_and_b32 v{17+2*q}, s40, v{r+q}")
            for q in range(4):
                A(f"    v_pk_add_f32 v[{16+2*q}:{17+2*q}], v[{16+2*q}:{17+2*q}], s[46:47] op_sel_hi:[1,0] neg_lo:[0,1] neg_hi:[0,1]")
            for q in range(4):
                a1 = 8 + 2 * (q & 1); a2 = 12 + 2 * (q & 1)
                A(f"    v_pk_add_f32 v[{a1}:{a1+1}], v[{a1}:{a1+1}], v[{16+2*q}:{17+2*q}]")
                A(f"    v_pk_fma_f32 v[{a2}:{a2+1}], v[{16+2*q}:{17+2*q}], v[{16+2*q}:{17+2*q}], v[{a2}:{a2+1}]")
        def post(k):
            A("    v_pk_add_f32 v[8:9], v[8:9], v[10:11]")
            A("    v_pk_add_f32 v[12:13], v[12:13], v[14:15]")
            A("    s_lshl_b32 s3, s36, 3")
            A("    v_add_f32 v8, v8, v9")
            A("    v_add_f32 v12, v12, v13")
            A(f"    v_mov_b32 v4, s3")
            reduce2(8, 12)
            A(f"    v_mul_f32 v9, {hex(f2u(1.0/nw))}, v8")
            A(f"    v_mov_b32 v5, 1")
            A(f"    v_fma_f32 v7, -v9, v8, v12             ; M2")
            A(f"    v_add_f32 v6, s46, v9                  ; mean")
            A(f"    v_mov_b32 v8, 0")
            A("    s_mov_b32 exec_lo, 0")
            A("    s_mov_b32 exec_hi, 0x80000000")
            A(f"    ds_write_b64 v4, v[6:7] offset:{k*64}")
            A(f"    ds_add_u32 v8, v5 offset:{128+4*k}")
            A("    s_mov_b64 exec, -1")
        lastc = [None]
        def norm_store(i):
            k, c, h = tiles[i]
            r = D0 + 4 * i
            t = 16 + 8 * (i & 1)
            sp = 48 + 2 * (i & 1)
            A(f"    v_readlane_b32 s{sp}, v2, {c}")
            A(f"    v_readlane_b32 s{sp+1}, v3, {c}")
            for q in range(4):
                A(f"    v_lshlrev_b32 v{t+2*q}, 16, v{r+q}")
                A(f"    v_and_b32 v{t+1+2*q}, s40, v{r+q}")
            for q in range(4):
                A(f"    v_pk_fma_f32 v[{t+2*q}:{t+1+2*q}], v[{t+2*q}:{t+1+2*q}], s[{sp}:{sp+1}], s[{sp}:{sp+1}] op_sel:[0,0,1] op_sel_hi:[1,0,1]")
            for q in range(4):
                A(f"    v_cvt_pk_bf16_f32 v{r+q}, v{t+2*q}, v{t+1+2*q}")
            o = so(i)
            st = [p for p in pend if p[0] == 'S']
            if SW and len(st) >= SW: wait_for(st[0])
            A(f"    buffer_store_dwordx4 v[{r}:{r+3}], {va(i)}, s[20:23], {o} offen {STNT}".rstrip()); pend.append(('S', i))
        def get_scale(k):
            A("    s_barrier")
            A(f"    ds_read_b64 v[2:3], v0 offset:{256+128*k}")
            A("    s_waitcnt lgkmcnt(0)")
        A("    s_waitcnt lgkmcnt(0)")
        A("    s_mov_b32 s16, s4")
        A("    s_mov_b32 s17, s5")
        nxt = 0
        for i in range(W): ld(i); nxt += 1
        A("    s_mov_b32 s20, s10")
        A("    s_mov_b32 s21, s11")
        A("    v_lshlrev_b32 v0, 3, v0                ; lane*8")
        A("    s_barrier")
        done = 0
        for i in range(T):
            wait_for(('L', i))
            if STAMP and i == 0: A("    s_memrealtime s[82:83]")
            win = W2 if (W2 and i >= Tc - W) else W
            while nxt < T and nxt <= i + win: ld(nxt); nxt += 1
            if XI and i == T - XI:
                get_scale(0)
            stats(i)
            if i == Tc - 1: post(0)
            if i == T - 1: post(1)
            if XI and i >= T - XI:
                norm_store(done); done += 1
        if STAMP: A("    s_memrealtime s[84:85]")
        if not XI: get_scale(0)
        if STAMP: A("    s_memrealtime s[86:87]")
        while done < Tc: norm_store(done); done += 1
        get_scale(1)
        if STAMP: A("    s_memrealtime s[88:89]")
        while done < T: norm_store(done); done += 1
        if STAMP: A("    s_branch L_stamp")
        else: A("    s_endpgm")
    def reduce2(a, b, steps=("row_shr:1", "row_shr:2", "row_shr:4", "row_shr:8", "B15", "B31")):
        for m in steps:
            if m == "B15": mm = "row_bcast:15 row_mask:0xa bank_mask:0xf"
            elif m == "B31": mm = "row_bcast:31 row_mask:0xc bank_mask:0xf"
            else: mm = m + " row_mask:0xf bank_mask:0xf bound_ctrl:0"
            A("    s_nop 0" if b is not None else "    s_nop 1")
            A(f"    v_add_f32_dpp v{a}, v{a}, v{a} {mm}")
            if b is not None: A(f"    v_add_f32_dpp v{b}, v{b}, v{b} {mm}")
    for par in paths:
        if par == 1: A("L_data1:")
        data_path(par)
    A("L_service:")
    if SPRIO: A(f"    s_setprio {SPRIO}")
    A("    v_mov_b32 v4, 0")
    A("    v_mov_b32 v5, 0")
    A("    ds_write_b64 v4, v[4:5] offset:128")
    A("    s_mov_b32 s26, 0x100000")
    A("    s_mov_b32 s27, 0x20000")
    A("    s_mov_b32 s30, 896")
    A("    s_mov_b32 s31, 0x20000")
    A("    s_mov_b32 s34, 896")
    A("    s_mov_b32 s35, 0x20000")
    A("    s_mul_i32 s3, s41, 28")
    A("    v_lshl_add_u32 v8, v0, 1, s3")
    A("    s_lshl_b32 s14, s41, 7")
    A("    s_add_u32 s14, s14, 0x80000")
    A("    s_waitcnt lgkmcnt(0)")
    A("    s_barrier")
    A("    s_load_dwordx2 s[42:43], s[12:13], s14 ; epoch")
    for a, b in [(28, 6), (29, 7), (32, 8), (33, 9), (24, 12), (25, 13)]: A(f"    s_mov_b32 s{a}, s{b}")
    A("    buffer_load_ushort v20, v8, s[28:31], 0 offen")
    A("    buffer_load_ushort v21, v8, s[32:35], 0 offen")
    A("    buffer_load_ushort v22, v8, s[28:31], 0 offen offset:448")
    A("    buffer_load_ushort v23, v8, s[32:35], 0 offen offset:448")
    A("    v_lshlrev_b32 v1, 3, v0                ; lane*8")
    A("    s_lshl_b32 s3, s41, 8")
    A("    v_lshl_add_u32 v10, v0, 4, s3")
    A("    s_lshl_b32 s15, s38, 4")
    A("    s_add_u32 s15, s15, s3")
    A("    v_mov_b32 v11, s15")
    nwv = [(14 + RB) * 512 if p == RBPAR else (14 - RB) * 512 for p in (0, 1)] if RB else [14 * 512] * 2
    A(f"    v_mov_b32 v24, {hex(f2u(8.0*nwv[0]))}")
    if RB:
        A(f"    v_mov_b32 v25, {hex(f2u(8.0*nwv[1]))}")
        A("    v_and_b32 v26, 1, v0")
        A("    v_cmp_eq_u32 vcc, 1, v26")
        A("    s_bitcmp1_b32 s38, 0")
        A(f"    s_mov_b32 s39, {hex(f2u(float(nwv[0])))}")
        A(f"    s_cselect_b32 s39, {hex(f2u(float(nwv[1])))}, s39")
        A("    v_cndmask_b32 v24, v24, v25, vcc")
    else:
        A(f"    s_mov_b32 s39, {hex(f2u(float(nwv[0])))}")
    A("    s_waitcnt lgkmcnt(0)")
    A("    s_mul_i32 s44, s42, 0x9E3779B1")
    A("    s_add_u32 s44, s44, 0x7F4A7C15         ; tag1")
    A("    s_mul_i32 s45, s43, 0x85EBCA6D")
    A("    s_add_u32 s45, s45, 0x2545F491         ; tag2")
    for k in range(2):
        A(f"L_wait{k}:")
        A(f"    ds_read_b32 v6, v4 offset:{128+4*k}")
        A("    s_waitcnt lgkmcnt(0)")
        A("    v_readfirstlane_b32 s3, v6")
        A("    s_cmp_eq_u32 s3, 8")
        A(f"    s_cbranch_scc1 L_got{k}")
        A(f"    s_sleep {LSLEEP}")
        A(f"    s_branch L_wait{k}")
        A(f"L_got{k}:")
        if STAMP: A(f"    s_memrealtime s[{82+4*k}:{83+4*k}]")
        A("    s_mov_b64 exec, 0xff")
        A(f"    ds_read_b64 v[6:7], v1 offset:{64*k}")
        A("    s_waitcnt lgkmcnt(0)")
        A("    v_mov_b32 v8, v6")
        reduce2(8, None, ("row_shr:1", "row_shr:2", "row_shr:4"))
        A("    v_mul_f32 v8, 0.125, v8" if False else f"    v_mul_f32 v8, {hex(f2u(0.125))}, v8")
        A("    s_nop 0")
        A("    v_readlane_b32 s47, v8, 7")
        A("    s_nop 1")
        A("    v_subrev_f32 v6, s47, v6")
        A("    v_mul_f32 v9, s39, v6")
        A("    v_fma_f32 v14, v9, v6, v7")
        reduce2(14, None, ("row_shr:1", "row_shr:2", "row_shr:4"))
        A("    v_mov_b32 v12, s47")
        A("    v_mov_b32 v13, s44")
        A("    v_mov_b32 v15, s45")
        A("    s_mov_b64 exec, 0x80")
        if not NOPOLL: A(f"    buffer_store_dwordx4 v[12:15], v11, s[24:27], 0 offen offset:{0} sc1" if k == 0 else
                         f"    buffer_store_dwordx4 v[12:15], v11, s[24:27], s37 offen sc1")
        A("    s_mov_b64 exec, 0xffff")
        A(f"    s_mov_b32 s94, {SPINMAX}")
        A(f"L_poll{k}:")
        if NOPOLL:
            A("    s_waitcnt vmcnt(0)")
        else:
            A(f"    buffer_load_dwordx4 v[16:19], v10, s[24:27], {'0' if k == 0 else 's37'} offen sc1")
            A("    s_waitcnt vmcnt(0)")
            A("    v_cmp_eq_u32 vcc, s44, v17")
            A("    v_cmp_eq_u32 s[76:77], s45, v19")
            A("    s_and_b64 vcc, vcc, s[76:77]")
            A("    s_cmp_eq_u64 vcc, exec")
            A(f"    s_cbranch_scc1 L_ready{k}")
            if SLEEP: A(f"    s_sleep {SLEEP}")
            A("    s_sub_u32 s94, s94, 1")
            A("    s_cmp_lg_u32 s94, 0")
            A(f"    s_cbranch_scc1 L_poll{k}")
        A(f"L_ready{k}:")
        if STAMP: A(f"    s_memrealtime s[{84+4*k}:{85+4*k}]")
        A("    v_mul_f32 v8, v24, v16")
        reduce2(8, None, ("row_shr:1", "row_shr:2", "row_shr:4", "row_shr:8"))
        A(f"    v_mul_f32 v8, {hex(f2u(1.0/N))}, v8")
        A("    s_nop 0")
        A("    v_readlane_b32 s47, v8, 15")
        A("    s_nop 1")
        A("    v_subrev_f32 v16, s47, v16")
        A("    v_mul_f32 v9, v24, v16")
        A("    v_fma_f32 v8, v9, v16, v18")
        reduce2(8, None, ("row_shr:1", "row_shr:2", "row_shr:4", "row_shr:8"))
        A(f"    v_mul_f32 v8, {hex(f2u(1.0/N))}, v8  ; var")
        A("    v_mov_b32 v9, s47")
        A("    v_max_f32 v8, 0, v8")
        A("    v_cvt_pk_bf16_f32 v12, v9, v9")
        A("    v_lshlrev_b32 v12, 16, v12")
        A("    v_sub_f32 v13, v9, v12")
        A("    v_fma_f32 v8, v13, v13, v8             ; E[(x-mu_b)^2]")
        A("    v_cvt_pk_bf16_f32 v8, v8, v8")
        A("    v_lshlrev_b32 v8, 16, v8")
        A(f"    v_add_f32 v8, {hex(f2u(1e-5))}, v8")
        A("    v_cvt_pk_bf16_f32 v8, v8, v8")
        A("    v_lshlrev_b32 v8, 16, v8")
        A("    v_sqrt_f32 v8, v8")
        A("    s_nop 0")
        A("    v_cvt_pk_bf16_f32 v8, v8, v8")
        A("    v_lshlrev_b32 v8, 16, v8")
        A("    v_rcp_f32 v8, v8")
        A("    s_nop 0")
        A("    v_readlane_b32 s46, v8, 15             ; rstd")
        A(f"    v_lshlrev_b32 v6, 16, v{20+2*k}")
        A(f"    v_lshlrev_b32 v7, 16, v{21+2*k}")
        A("    v_mul_f32 v6, s46, v6                  ; scale_c")
        A("    v_fma_f32 v7, -v12, v6, v7             ; shift_c")
        A(f"    ds_write_b64 v1, v[6:7] offset:{256+128*k}")
        if k == 0:
            A("    s_mov_b32 s37, 4096")
        A("    s_mov_b64 exec, -1")
        A("    s_waitcnt lgkmcnt(0)")
        A("    s_barrier")
    if not NOPOLL:
        A("    v_mov_b32 v6, s44")
        A("    v_mov_b32 v7, s45")
        A("    v_mov_b32 v8, s14")
        A("    s_mov_b64 exec, 1")
        A("    buffer_store_dwordx2 v[6:7], v8, s[24:27], 0 offen sc1")
    if PROBE:
        A("    s_branch L_stamp")
        A("L_probe:")
        A("    s_setprio 3")
        A(f"    s_add_u32 s3, s41, 16")
        A(f"    s_mul_i32 s3, s3, {GB}")
        A(f"    s_add_u32 s3, s3, {7*131072}")
        A("    s_lshl_b32 s14, s38, 7")
        A("    s_add_u32 s3, s3, s14")
        A("    s_waitcnt lgkmcnt(0)")
        A("    s_cmp_eq_u32 s36, 9")
        A("    s_cselect_b32 s14, s4, s10")
        A("    s_cselect_b32 s15, s5, s11")
        A("    s_add_u32 s14, s14, s3")
        A("    s_addc_u32 s15, s15, 0")
        A("    s_load_dword s16, s[14:15], 0x1c000")
        A("    s_barrier")
        A("    s_waitcnt lgkmcnt(0)")
        offs = [0x0, 0x2000, 0x4800, 0x6800, 0x9000, 0xb000, 0xd800, 0xf800]
        for j, o in enumerate(offs):
            A(f"    s_memtime s[20:21]")
            A(f"    s_load_dword s16, s[14:15], {hex(o)}")
            A("    s_waitcnt lgkmcnt(0)")
            A(f"    s_memtime s[22:23]")
            A("    s_waitcnt lgkmcnt(0)")
            A(f"    s_sub_u32 s{50+j}, s22, s20")
        for j in range(4):
            A(f"    s_lshl_b32 s{51+2*j}, s{51+2*j}, 16")
            A(f"    s_or_b32 s{82+2*j}, s{50+2*j}, s{51+2*j}")
    if STAMP:
        A("L_stamp:")
        A("    s_mov_b64 exec, -1")
        A("    s_waitcnt vmcnt(0)")
        A("    s_memrealtime s[90:91]")
        A("    s_getreg_b32 s92, hwreg(HW_REG_HW_ID)")
        A("    s_getreg_b32 s93, hwreg(HW_REG_XCC_ID)")
        A("    s_mov_b32 s24, s12")
        A("    s_mov_b32 s25, s13")
        A("    s_mov_b32 s26, 0x1000000")
        A("    s_mov_b32 s27, 0x20000")
        A(f"    s_mul_i32 s3, s2, {NWV}")
        A("    s_add_u32 s3, s3, s36")
        A("    s_lshl_b32 s3, s3, 6")
        A("    s_add_u32 s3, s3, 0x90000")
        A("    v_mov_b32 v8, s3")
        A("    s_waitcnt lgkmcnt(0)")
        for k, sr in enumerate([80, 82, 84, 86, 88, 90, 92, 93]): A(f"    v_mov_b32 v{12+k}, s{sr}")
        A("    s_mov_b64 exec, 1")
        A("    buffer_store_dwordx4 v[12:15], v8, s[24:27], 0 offen")
        A("    buffer_store_dwordx4 v[16:19], v8, s[24:27], 0 offen offset:16")
    A("L_end:")
    A("    s_endpgm")
    A('.section .rodata,"a"'); A(".p2align 6")
    A(f".amdhsa_kernel {name}_kernel")
    A(f"  .amdhsa_next_free_vgpr {nvgpr}")
    A(f"  .amdhsa_next_free_sgpr 96")
    A(f"  .amdhsa_accum_offset {(nvgpr+3)//4*4}")
    A("  .amdhsa_group_segment_fixed_size 0")
    A("  .amdhsa_kernarg_size 48")
    A("  .amdhsa_user_sgpr_count 2")
    A("  .amdhsa_user_sgpr_kernarg_segment_ptr 1")
    A("  .amdhsa_system_sgpr_workgroup_id_x 1")
    A("  .amdhsa_float_denorm_mode_32 3")
    A(".end_amdhsa_kernel")
    return "\n".join(L) + "\n"

if __name__ == "__main__":
    kw = {}; out = None
    for a in sys.argv[1:]:
        k, v = a.split("=", 1)
        if k == "out": out = v; continue
        try: v = int(v)
        except ValueError: pass
        kw[k] = v
    s = gen(**kw)
    if out: open(out, "w").write(s)
    else: sys.stdout.write(s)
```

```python
import sys, struct
def f2u(f): return struct.unpack('<I', struct.pack('<f', f))[0]

def gen(K=4, W=4, X0=14, R=1, LDNT="nt", STNT="sc0 sc1", STAMP=0, SLEEP=1, LSLEEP=1, FSLEEP=1, SPRIO=3, ALT=1,
        SPINMAX=3000, NOPOLL=0, SW=0, W2=0, W2AT=99, name="standalone__groupnorm__prompt", LASTNT=None, NLAST=0,
        SCHED=None, SLOT=16, DIAG=-1, CLS=None):
    L = []; A = L.append
    GB = 14 * 131072
    N = 14 * 65536
    MEM = 8 * K
    GPC = 32 // K
    Tc = 28 // K
    T = 28
    CPT = K // 2
    WPC = 8 // CPT
    D0 = 32
    VA2 = D0 + 4 * T
    nvgpr = VA2 + 1
    lgM = MEM.bit_length() - 1
    TAB = MEM * SLOT
    NB = MEM // 16
    CNT = 256; FLG = 272; SC = 512
    hdr = open('standalone__groupnorm__prompt.s.ref').read().split('\n')
    for ln in hdr:
        if ln.startswith('; @launch'): break
        A(ln)
    A(f"; @launch grid=(256,1,1) block=(576,1,1) lds=2048")
    A('.amdgcn_target "amdgcn-amd-amdhsa--gfx950"')
    A(".text"); A(f".globl {name}_kernel"); A(".p2align 8"); A(f".type {name}_kernel,@function")
    A(f"{name}_kernel:")
    A("    s_cmp_ge_u32 s2, 256")
    A("    s_cbranch_scc1 L_end")
    A("    s_load_dwordx8 s[4:11], s[0:1], 0      ; x, g, b, out")
    A("    s_load_dwordx2 s[12:13], s[0:1], 40    ; ws")
    if STAMP: A("    s_memrealtime s[80:81]")
    A("    v_lshrrev_b32 v1, 6, v0")
    A("    v_and_b32 v0, 63, v0                   ; lane")
    A("    v_readfirstlane_b32 s36, v1")
    A(f"    s_lshr_b32 s41, s2, {lgM}")
    A(f"    s_and_b32 s38, s2, {MEM-1}                 ; member")
    A("    s_cmp_eq_u32 s36, 8")
    A("    s_cbranch_scc1 L_service")
    def reduce2(a, b, steps=("row_shr:1", "row_shr:2", "row_shr:4", "row_shr:8", "B15", "B31")):
        for m in steps:
            if m == "B15": mm = "row_bcast:15 row_mask:0xa bank_mask:0xf"
            elif m == "B31": mm = "row_bcast:31 row_mask:0xc bank_mask:0xf"
            else: mm = m + " row_mask:0xf bank_mask:0xf bound_ctrl:0"
            A("    s_nop 0" if b is not None else "    s_nop 1")
            A(f"    v_add_f32_dpp v{a}, v{a}, v{a} {mm}")
            if b is not None: A(f"    v_add_f32_dpp v{b}, v{b}, v{b} {mm}")
    A("    s_mov_b32 s40, 0xffff0000")
    A(f"    s_mul_i32 s39, s41, {GB}")
    A(f"    s_lshl_b32 s3, s38, {(WPC*1024).bit_length()-1}")
    A("    s_add_u32 s39, s39, s3")
    if CPT == 1:
        A("    s_lshl_b32 s3, s36, 10")
        A("    s_add_u32 s39, s39, s3")
    else:
        A(f"    s_and_b32 s3, s36, {WPC-1}")
        A("    s_lshl_b32 s3, s3, 10")
        A("    s_add_u32 s39, s39, s3")
        A(f"    s_lshr_b32 s37, s36, {WPC.bit_length()-1}")
        A("    s_lshl_b32 s3, s37, 17")
        A("    s_add_u32 s39, s39, s3")
    A("    v_lshl_add_u32 v1, v0, 4, s39")
    A(f"    s_mov_b32 s18, {32*GB}")
    A("    s_mov_b32 s19, 0x20000")
    A(f"    s_mov_b32 s22, {32*GB}")
    A("    s_mov_b32 s23, 0x20000")
    A(f"    v_xor_b32 v{VA2}, 0x2000, v1")
    nw = Tc * 512
    if CLS is None: classes = [(W, W, X0, W2, W2AT)]
    else: classes = [tuple(int(y) for y in x.split('.')) for x in str(CLS).split('_')]
    ncl = len(classes)
    for cl in range(1, ncl):
        A(f"    s_and_b32 s3, s41, {ncl-1}")
        A(f"    s_cmp_eq_u32 s3, {cl}")
        A(f"    s_cbranch_scc1 L_class{cl}")
    def data_path(cl, W0, W, X0, W2, W2AT):
        pend = []
        def wait_for(op):
            idx = pend.index(op); n = len(pend) - 1 - idx
            A(f"    s_waitcnt vmcnt({n})")
            del pend[:idx + 1]
        def va(i): return f"v{VA2}" if (ALT and (i % Tc) & 1) else "v1"
        def so(i):
            o = (i // Tc) * GPC * GB + (i % Tc) * CPT * 131072
            if o == 0: return "0"
            A(f"    s_mov_b32 s3, {o}")
            return "s3"
        def ld(i):
            r = D0 + 4 * i; o = so(i)
            A(f"    buffer_load_dwordx4 v[{r}:{r+3}], {va(i)}, s[16:19], {o} offen {LDNT}".rstrip()); pend.append(('L', i))
        def stats(i):
            r = D0 + 4 * i
            first = (i % Tc == 0)
            if first:
                A(f"    v_readfirstlane_b32 s46, v{r}")
            for q in range(4):
                A(f"    v_lshlrev_b32 v{16+2*q}, 16, v{r+q}")
                A(f"    v_and_b32 v{17+2*q}, s40, v{r+q}")
                if first and q == 0: A(f"    s_lshl_b32 s46, s46, 16                ; pivot")
            for q in range(4):
                d = (8 + 2 * q) if (first and q < 2) else (16 + 2 * q)
                A(f"    v_pk_add_f32 v[{d}:{d+1}], v[{16+2*q}:{17+2*q}], s[46:47] op_sel_hi:[1,0] neg_lo:[0,1] neg_hi:[0,1]")
            for q in range(4):
                a1 = 8 + 2 * (q & 1); a2 = 12 + 2 * (q & 1)
                if first and q < 2:
                    A(f"    v_pk_mul_f32 v[{a2}:{a2+1}], v[{a1}:{a1+1}], v[{a1}:{a1+1}]")
                else:
                    A(f"    v_pk_add_f32 v[{a1}:{a1+1}], v[{a1}:{a1+1}], v[{16+2*q}:{17+2*q}]")
                    A(f"    v_pk_fma_f32 v[{a2}:{a2+1}], v[{16+2*q}:{17+2*q}], v[{16+2*q}:{17+2*q}], v[{a2}:{a2+1}]")
        nw = Tc * 512
        def post(k):
            A("    v_pk_add_f32 v[8:9], v[8:9], v[10:11]")
            A("    v_pk_add_f32 v[12:13], v[12:13], v[14:15]")
            A("    s_nop 0")
            A("    v_add_f32 v8, v8, v9")
            A("    v_add_f32 v12, v12, v13")
            reduce2(8, 12)
            A(f"    v_mul_f32 v9, {hex(f2u(1.0/nw))}, v8")
            A("    s_mov_b32 exec_lo, 0")
            A("    s_mov_b32 exec_hi, 0x80000000")
            A(f"    v_fma_f32 v11, -v9, v8, v12            ; M2")
            A(f"    v_add_f32 v10, s46, v9                 ; mean")
            A(f"    ds_write_b64 v4, v[10:11] offset:{k*64}")
            A(f"    ds_add_u32 v5, v6 offset:{CNT+4*k}")
            A("    s_mov_b64 exec, -1")
        def get_scale(k):
            A(f"L_flag{k}_{cl}:")
            A(f"    ds_read_b32 v7, v5 offset:{FLG+4*k}")
            A(f"    ds_read_b64 v[2:3], v0 offset:{SC+128*k}")
            A("    s_waitcnt lgkmcnt(0)")
            A("    v_readfirstlane_b32 s3, v7")
            A("    s_cmp_lg_u32 s3, 0")
            A(f"    s_cbranch_scc1 L_flagok{k}_{cl}")
            A(f"    s_sleep {FSLEEP}")
            A(f"    s_branch L_flag{k}_{cl}")
            A(f"L_flagok{k}_{cl}:")
            if STAMP and k == 0: A("    s_memrealtime s[86:87]")
            if STAMP and k == K - 1: A("    s_memrealtime s[88:89]")
        def norm_store(i):
            if i % Tc == 0: get_scale(i // Tc)
            c = (i % Tc) * CPT
            r = D0 + 4 * i
            t = 16 + 8 * (i & 1)
            sp = 48 + 2 * (i & 1)
            A(f"    v_readlane_b32 s{sp}, v2, {c}")
            A(f"    v_readlane_b32 s{sp+1}, v3, {c}")
            for q in range(4):
                A(f"    v_lshlrev_b32 v{t+2*q}, 16, v{r+q}")
                A(f"    v_and_b32 v{t+1+2*q}, s40, v{r+q}")
            for q in range(4):
                A(f"    v_pk_fma_f32 v[{t+2*q}:{t+1+2*q}], v[{t+2*q}:{t+1+2*q}], s[{sp}:{sp+1}], s[{sp}:{sp+1}] op_sel:[0,0,1] op_sel_hi:[1,0,1]")
            for q in range(4):
                A(f"    v_cvt_pk_bf16_f32 v{r+q}, v{t+2*q}, v{t+1+2*q}")
            o = so(i)
            st = [p for p in pend if p[0] == 'S']
            if SW and len(st) >= SW: wait_for(st[0])
            pol = LASTNT if (LASTNT is not None and i >= T - NLAST) else STNT
            A(f"    buffer_store_dwordx4 v[{r}:{r+3}], {va(i)}, s[20:23], {o} offen {pol}".rstrip()); pend.append(('S', i))
        A("    s_waitcnt lgkmcnt(0)")
        A("    s_mov_b32 s16, s4")
        A("    s_mov_b32 s17, s5")
        nxt = 0
        for i in range(W0): ld(i); nxt += 1
        A("    s_mov_b32 s20, s10")
        A("    s_mov_b32 s21, s11")
        if CPT > 1: A("    v_add_u32 v0, s37, v0")
        A("    s_lshl_b32 s3, s36, 3")
        A("    v_mov_b32 v4, s3")
        A("    v_mov_b32 v5, 0")
        A("    v_mov_b32 v6, 1")
        A("    v_lshlrev_b32 v0, 3, v0")
        A("    s_barrier")
        done = 0
        if SCHED is not None: sched = [int(ch) for ch in str(SCHED)]
        else: sched = [R if i >= X0 else 0 for i in range(T)]
        for i in range(T):
            wait_for(('L', i))
            if STAMP and i == 0: A("    s_memrealtime s[82:83]")
            win = min(W2, W + 2 * (i - W2AT + 1)) if (W2 and i >= W2AT) else min(W, W0 + i)
            while nxt < T and nxt <= i + win: ld(nxt); nxt += 1
            stats(i)
            if i % Tc == Tc - 1: post(i // Tc)
            for _ in range(sched[i]):
                if done // Tc < (i + 1) // Tc:
                    norm_store(done); done += 1
        if STAMP: A("    s_memrealtime s[84:85]")
        while done < T: norm_store(done); done += 1
        if STAMP: A("    s_branch L_stamp")
        else: A("    s_endpgm")
    for cl, pr in enumerate(classes):
        if cl: A(f"L_class{cl}:")
        data_path(cl, *pr)
    A("L_service:")
    if SPRIO: A(f"    s_setprio {SPRIO}")
    A("    v_mov_b32 v4, 0")
    A("    v_mov_b32 v5, 0")
    A("    v_mov_b32 v6, 0")
    A("    v_mov_b32 v7, 0")
    A(f"    ds_write_b128 v4, v[4:7] offset:{CNT}")
    A(f"    ds_write_b128 v4, v[4:7] offset:{FLG}")
    A("    s_mov_b32 s30, 896")
    A("    s_mov_b32 s31, 0x20000")
    A("    s_mov_b32 s34, 896")
    A("    s_mov_b32 s35, 0x20000")
    A("    s_mul_i32 s3, s41, 28")
    A("    v_lshl_add_u32 v8, v0, 1, s3")
    A("    s_lshl_b32 s14, s41, 7")
    A("    s_add_u32 s14, s14, 0x80000")
    A(f"    s_mul_i32 s3, s41, {TAB}")
    A(f"    s_mul_i32 s15, s38, {SLOT}")
    A(f"    s_mul_i32 s24, s41, {GB}")
    A("    s_waitcnt lgkmcnt(0)")
    A("    s_barrier")
    A("    s_load_dwordx2 s[20:21], s[12:13], s14 ; epoch")
    for x, y in [(28, 6), (29, 7), (32, 8), (33, 9)]: A(f"    s_mov_b32 s{x}, s{y}")
    for k in range(K):
        A(f"    buffer_load_ushort v{20+2*k}, v8, s[28:31], 0 offen offset:{k*GPC*28}")
        A(f"    buffer_load_ushort v{21+2*k}, v8, s[32:35], 0 offen offset:{k*GPC*28}")
    A("    v_lshlrev_b32 v1, 3, v0                ; lane*8")
    A("    s_add_u32 s26, s12, s3")
    A("    s_addc_u32 s27, s13, 0")
    A("    s_mov_b32 s16, s4")
    A("    s_mov_b32 s17, s5")
    A(f"    s_mov_b32 s18, {32*GB}")
    A("    s_mov_b32 s19, 0x20000")
    A("    v_mov_b32 v5, 1")
    A("    s_mov_b32 s33, 0")
    if STAMP: A("    s_mov_b32 s22, s80")
    A("    s_waitcnt lgkmcnt(0)")
    A("    s_mul_i32 s20, s20, 0x9E3779B1")
    A("    s_add_u32 s20, s20, 0x7F4A7C15         ; tag1")
    A("    s_mul_i32 s21, s21, 0x85EBCA6D")
    A("    s_add_u32 s21, s21, 0x2545F491         ; tag2")
    for k in range(K):
        A(f"L_wait{k}:")
        A(f"    ds_read_b32 v6, v4 offset:{CNT+4*k}")
        A(f"    ds_read_b64 v[16:17], v1 offset:{64*k}")
        A("    s_waitcnt lgkmcnt(0)")
        A("    v_readfirstlane_b32 s3, v6")
        A("    s_cmp_eq_u32 s3, 8")
        A(f"    s_cbranch_scc1 L_got{k}")
        A(f"    s_sleep {LSLEEP}")
        A(f"    s_branch L_wait{k}")
        A(f"L_got{k}:")
        if STAMP and DIAG < 0 and k in (0, K-1): A(f"    s_memrealtime s[{4+4*(k>0)}:{5+4*(k>0)}]")
        if STAMP and DIAG == k: A("    s_memrealtime s[4:5]")
        A("    s_mov_b64 exec, 0xff")
        A("    v_mov_b32 v8, v16")
        reduce2(8, None, ("row_shr:1", "row_shr:2", "row_shr:4"))
        A(f"    v_mul_f32 v8, {hex(f2u(0.125))}, v8")
        A("    s_mov_b32 s29, s20")
        A("    v_readlane_b32 s28, v8, 7")
        A("    s_mov_b32 s31, s21")
        A(f"    s_add_u32 s3, s15, {GPC*TAB*k}")
        A("    v_subrev_f32 v6, s28, v16")
        A(f"    v_mul_f32 v9, {hex(f2u(float(nw)))}, v6")
        A("    v_fma_f32 v14, v9, v6, v17")
        reduce2(14, None, ("row_shr:1", "row_shr:2", "row_shr:4"))
        A(f"    s_add_u32 s23, s15, {GPC*TAB*k+8}")
        A("    v_readlane_b32 s30, v14, 7")
        A("    s_mov_b64 exec, -1")
        A(f"    s_mov_b32 s25, {SPINMAX}")
        A("    s_nop 1")
        if not NOPOLL:
            A("    s_atomic_swap_x2 s[28:29], s[26:27], s3")
            A("    s_atomic_swap_x2 s[30:31], s[26:27], s23")
        if STAMP and DIAG == k:
            A("    s_waitcnt lgkmcnt(0)")
            A("    s_memrealtime s[6:7]")
            for j in range(4):
                A(f"    s_load_dwordx16 s[{36+16*j}:{51+16*j}], s[26:27], {hex(GPC*TAB*k+64*j)} glc")
            A("    s_waitcnt lgkmcnt(0)")
            A("    s_memrealtime s[8:9]")
            A(f"    s_load_dwordx16 s[36:51], s[26:27], {hex(GPC*TAB*k)} glc")
            A("    s_waitcnt lgkmcnt(0)")
            A("    s_memrealtime s[10:11]")
        for b in range(NB):
            A(f"L_poll{k}_{b}:")
            if SLOT == 16:
                for j in range(4):
                    A(f"    s_load_dwordx16 s[{36+16*j}:{51+16*j}], s[26:27], {hex(GPC*TAB*k+256*b+64*j)} glc")
            else:
                for j in range(16):
                    A(f"    s_load_dwordx4 s[{36+4*j}:{39+4*j}], s[26:27], {hex(GPC*TAB*k+SLOT*(16*b+j))} glc")
            A("    s_waitcnt lgkmcnt(0)")
            if not NOPOLL:
                A("    s_xor_b32 s3, s37, s20")
                for j in range(16):
                    if j:
                        A(f"    s_xor_b32 s23, s{37+4*j}, s20")
                        A(f"    s_or_b32 s3, s3, s23")
                    A(f"    s_xor_b32 s23, s{39+4*j}, s21")
                    A(f"    s_or_b32 s3, s3, s23")
                A(f"    s_cbranch_scc0 L_ready{k}_{b}")
                if SLEEP: A(f"    s_sleep {SLEEP}")
                A("    s_sub_u32 s25, s25, 1")
                A("    s_cmp_lg_u32 s25, 0")
                A(f"    s_cbranch_scc1 L_poll{k}_{b}")
                A(f"    s_mov_b32 s32, {k*GPC*GB}")
                A(f"    s_getpc_b64 s[34:35]")
                A(f"L_ret{k}_{b}:")
                A(f"    s_add_u32 s34, s34, L_fin{k}-L_ret{k}_{b}")
                A(f"    s_addc_u32 s35, s35, 0")
                A(f"    s_branch L_fallback")
            A(f"L_ready{k}_{b}:")
            if b == 0:
                A("    v_mov_b32 v9, s36                      ; reference")
                A("    v_mov_b32 v10, 0")
                A("    v_mov_b32 v11, 0")
                A("    v_mov_b32 v12, 0")
                A("    v_mov_b32 v13, 0")
                A("    v_mov_b32 v14, s38")
                A("    v_mov_b32 v15, 0")
            for j in range(16):
                if b == 0 and j == 0: continue
                p = j & 1
                A(f"    v_sub_f32 v{16+p}, s{36+4*j}, v9")
                A(f"    v_add_f32 v{14+p}, s{38+4*j}, v{14+p}")
                A(f"    v_add_f32 v{10+p}, v{16+p}, v{10+p}")
                A(f"    v_fma_f32 v{12+p}, v{16+p}, v{16+p}, v{12+p}")
        A("    s_mov_b32 s33, 1")
        A("    v_add_f32 v10, v10, v11")
        A("    v_add_f32 v12, v12, v13")
        A("    v_add_f32 v14, v14, v15")
        A(f"    v_mul_f32 v10, {hex(f2u(1.0/MEM))}, v10")
        A(f"    v_mul_f32 v12, {hex(f2u(1.0/MEM))}, v12")
        A(f"    v_mul_f32 v8, {hex(f2u(1.0/N))}, v14")
        A("    v_fma_f32 v12, -v10, v10, v12")
        A("    v_add_f32 v9, v9, v10")
        A("    v_add_f32 v8, v8, v12                  ; var")
        A(f"L_fin{k}:")
        if STAMP and DIAG < 0 and k in (0, K-1): A(f"    s_memrealtime s[{6+4*(k>0)}:{7+4*(k>0)}]")
        A("    v_max_f32 v8, 0, v8")
        A("    v_cvt_pk_bf16_f32 v12, v9, v9")
        A("    v_lshlrev_b32 v12, 16, v12")
        A("    v_sub_f32 v13, v9, v12")
        A("    v_fma_f32 v8, v13, v13, v8             ; E[(x-mu_b)^2]")
        A("    v_cvt_pk_bf16_f32 v8, v8, v8")
        A("    v_lshlrev_b32 v8, 16, v8")
        A(f"    v_add_f32 v8, {hex(f2u(1e-5))}, v8")
        A("    v_cvt_pk_bf16_f32 v8, v8, v8")
        A("    v_lshlrev_b32 v8, 16, v8")
        A("    v_sqrt_f32 v8, v8")
        A("    s_waitcnt vmcnt(0)")
        A("    v_cvt_pk_bf16_f32 v8, v8, v8")
        A("    v_lshlrev_b32 v8, 16, v8")
        A("    v_rcp_f32 v8, v8")
        A(f"    v_lshlrev_b32 v6, 16, v{20+2*k}")
        A(f"    v_lshlrev_b32 v7, 16, v{21+2*k}")
        A("    v_mul_f32 v6, v8, v6                   ; scale_c")
        A("    v_fma_f32 v7, -v12, v6, v7             ; shift_c")
        A("    s_mov_b64 exec, 0xffff")
        A(f"    ds_write_b64 v1, v[6:7] offset:{SC+128*k}")
        A(f"    ds_write_b32 v4, v5 offset:{FLG+4*k}")
        A("    s_mov_b64 exec, -1")
    A("    s_cmp_eq_u32 s33, 0")
    A("    s_cbranch_scc1 L_svc_done")
    A("    s_mov_b32 s16, s12")
    A("    s_mov_b32 s17, s13")
    A("    s_mov_b32 s18, 0x100000")
    A("    v_mov_b32 v6, s20")
    A("    v_mov_b32 v7, s21")
    A("    v_mov_b32 v8, s14")
    A("    s_mov_b64 exec, 1")
    if not NOPOLL: A("    buffer_store_dwordx2 v[6:7], v8, s[16:19], 0 offen sc1")
    A("L_svc_done:")
    if STAMP:
        A("    s_waitcnt lgkmcnt(0)")
        A("    s_mov_b32 s80, s22")
        A("    s_mov_b32 s82, s4")
        A("    s_mov_b32 s84, s6")
        A("    s_mov_b32 s86, s8")
        A("    s_mov_b32 s88, s10")
        A("    s_mov_b32 s36, 8")
        A("    s_branch L_stamp")
    else:
        A("    s_endpgm")
    if not NOPOLL:
        A("L_fallback:")
        A("    s_add_u32 s32, s32, s24")
        A("    v_lshl_add_u32 v30, v0, 4, s32")
        A("    s_mov_b32 s23, 0xffff0000")
        A("    buffer_load_dword v31, v30, s[16:19], 0 offen")
        for z in range(8, 16): A(f"    v_mov_b32 v{z}, 0")
        A("    s_mov_b32 s3, 0")
        A("    s_waitcnt vmcnt(0)")
        A("    v_readfirstlane_b32 s28, v31")
        A("    s_lshl_b32 s28, s28, 16                ; pivot")
        A("L_fb_loop:")
        for j in range(4):
            A(f"    buffer_load_dwordx4 v[{32+4*j}:{35+4*j}], v30, s[16:19], s3 offen offset:{1024*j}")
        A("    s_waitcnt vmcnt(0)")
        for q in range(16):
            A(f"    v_lshlrev_b32 v{48+2*q}, 16, v{32+q}")
            A(f"    v_and_b32 v{49+2*q}, s23, v{32+q}")
        for q in range(16):
            A(f"    v_pk_add_f32 v[{48+2*q}:{49+2*q}], v[{48+2*q}:{49+2*q}], s[28:29] op_sel_hi:[1,0] neg_lo:[0,1] neg_hi:[0,1]")
        for q in range(16):
            a1 = 8 + 2 * (q & 1); a2 = 12 + 2 * (q & 1)
            A(f"    v_pk_add_f32 v[{a1}:{a1+1}], v[{a1}:{a1+1}], v[{48+2*q}:{49+2*q}]")
            A(f"    v_pk_fma_f32 v[{a2}:{a2+1}], v[{48+2*q}:{49+2*q}], v[{48+2*q}:{49+2*q}], v[{a2}:{a2+1}]")
        A("    s_add_u32 s3, s3, 4096")
        A(f"    s_cmp_lt_u32 s3, {GB}")
        A("    s_cbranch_scc1 L_fb_loop")
        A("    v_pk_add_f32 v[8:9], v[8:9], v[10:11]")
        A("    v_pk_add_f32 v[12:13], v[12:13], v[14:15]")
        A("    s_nop 0")
        A("    v_add_f32 v8, v8, v9")
        A("    v_add_f32 v12, v12, v13")
        reduce2(8, 12)
        A("    s_nop 0")
        A("    v_readlane_b32 s29, v8, 63")
        A("    v_readlane_b32 s30, v12, 63")
        A(f"    v_mov_b32 v10, {hex(f2u(1.0/N))}")
        A("    s_nop 0")
        A("    v_mul_f32 v11, s29, v10")
        A("    v_mul_f32 v8, s30, v10")
        A("    v_fma_f32 v8, -v11, v11, v8            ; var")
        A("    v_add_f32 v9, s28, v11                 ; mean")
        A("    s_setpc_b64 s[34:35]")
    if STAMP:
        A("L_stamp:")
        A("    s_mov_b64 exec, -1")
        A("    s_waitcnt vmcnt(0)")
        A("    s_memrealtime s[90:91]")
        A("    s_getreg_b32 s92, hwreg(HW_REG_HW_ID)")
        A("    s_getreg_b32 s93, hwreg(HW_REG_XCC_ID)")
        A("    s_mov_b32 s24, s12")
        A("    s_mov_b32 s25, s13")
        A("    s_mov_b32 s26, 0x1000000")
        A("    s_mov_b32 s27, 0x20000")
        A("    s_mul_i32 s3, s2, 9")
        A("    s_add_u32 s3, s3, s36")
        A("    s_lshl_b32 s3, s3, 6")
        A("    s_add_u32 s3, s3, 0x90000")
        A("    v_mov_b32 v8, s3")
        A("    s_waitcnt lgkmcnt(0)")
        for k, sr in enumerate([80, 82, 84, 86, 88, 90, 92, 93]): A(f"    v_mov_b32 v{12+k}, s{sr}")
        A("    s_mov_b64 exec, 1")
        A("    buffer_store_dwordx4 v[12:15], v8, s[24:27], 0 offen")
        A("    buffer_store_dwordx4 v[16:19], v8, s[24:27], 0 offen offset:16")
    A("L_end:")
    A("    s_endpgm")
    A('.section .rodata,"a"'); A(".p2align 6")
    A(f".amdhsa_kernel {name}_kernel")
    A(f"  .amdhsa_next_free_vgpr {nvgpr}")
    A(f"  .amdhsa_next_free_sgpr 100")
    A(f"  .amdhsa_accum_offset {(nvgpr+3)//4*4}")
    A("  .amdhsa_group_segment_fixed_size 0")
    A("  .amdhsa_kernarg_size 48")
    A("  .amdhsa_user_sgpr_count 2")
    A("  .amdhsa_user_sgpr_kernarg_segment_ptr 1")
    A("  .amdhsa_system_sgpr_workgroup_id_x 1")
    A("  .amdhsa_float_denorm_mode_32 3")
    A(".end_amdhsa_kernel")
    return "\n".join(L) + "\n"

if __name__ == "__main__":
    kw = {}; out = None
    for a in sys.argv[1:]:
        k, v = a.split("=", 1)
        if k == "out": out = v; continue
        if k not in ("SCHED", "CLS"):
            try: v = int(v)
            except ValueError: pass
        kw[k] = v
    s = gen(**kw)
    if out: open(out, "w").write(s)
    else: sys.stdout.write(s)
```

```python
import sys, struct
def f2u(f): return struct.unpack('<I', struct.pack('<f', f))[0]

def gen(K=4, W=4, X0=14, R=1, LDNT="nt", STNT="sc0 sc1", STAMP=0, SLEEP=1, LSLEEP=1, FSLEEP=1, SPRIO=3, ALT=1,
        SPINMAX=3000, NOPOLL=0, SW=0, W2=0, W2AT=99, name="standalone__groupnorm__prompt", LASTNT=None, NLAST=0,
        SCHED=None, SLOT=16, DIAG=-1, CLS=None, PS=64, SWN=99, TLBW=0, DMA=0, RBK="", RBC=7, RBPAR=0):
    L = []; A = L.append
    GB = 14 * 131072
    N = 14 * 65536
    MEM = 8 * K
    GPC = 32 // K
    Tc = 28 // K
    T = 28
    CPT = K // 2
    WPC = 8 // CPT
    D0 = 32
    RBK = [int(ch) for ch in str(RBK)]
    VA2 = D0 + 4 * (T + len(RBK))
    nvgpr = VA2 + 2
    lgM = MEM.bit_length() - 1
    TAB = (MEM // 4) * PS
    NB = MEM // 16
    CNT = 256; FLG = 272; SC = 512
    hdr = open('standalone__groupnorm__prompt.s.ref').read().split('\n')
    for ln in hdr:
        if ln.startswith('; @launch'): break
        A(ln)
    RING = 0
    if DMA: RING = max(W, W2) + 1
    A(f"; @launch grid=(256,1,1) block=(576,1,1) lds={2048 + 8*RING*1024}")
    A('.amdgcn_target "amdgcn-amd-amdhsa--gfx950"')
    A(".text"); A(f".globl {name}_kernel"); A(".p2align 8"); A(f".type {name}_kernel,@function")
    A(f"{name}_kernel:")
    A("    s_cmp_ge_u32 s2, 256")
    A("    s_cbranch_scc1 L_end")
    A("    s_load_dwordx8 s[4:11], s[0:1], 0      ; x, g, b, out")
    A("    s_load_dwordx2 s[12:13], s[0:1], 40    ; ws")
    if STAMP: A("    s_memrealtime s[80:81]")
    A("    v_lshrrev_b32 v1, 6, v0")
    A("    v_and_b32 v0, 63, v0                   ; lane")
    A("    v_readfirstlane_b32 s36, v1")
    A(f"    s_lshr_b32 s41, s2, {lgM}")
    A(f"    s_and_b32 s38, s2, {MEM-1}                 ; member")
    A("    s_cmp_eq_u32 s36, 8")
    A("    s_cbranch_scc1 L_service")
    def reduce2(a, b, steps=("row_shr:1", "row_shr:2", "row_shr:4", "row_shr:8", "B15", "B31")):
        for m in steps:
            if m == "B15": mm = "row_bcast:15 row_mask:0xa bank_mask:0xf"
            elif m == "B31": mm = "row_bcast:31 row_mask:0xc bank_mask:0xf"
            else: mm = m + " row_mask:0xf bank_mask:0xf bound_ctrl:0"
            A("    s_nop 0" if b is not None else "    s_nop 1")
            A(f"    v_add_f32_dpp v{a}, v{a}, v{a} {mm}")
            if b is not None: A(f"    v_add_f32_dpp v{b}, v{b}, v{b} {mm}")
    A("    s_mov_b32 s40, 0xffff0000")
    A(f"    s_mul_i32 s39, s41, {GB}")
    A(f"    s_lshl_b32 s3, s38, {(WPC*1024).bit_length()-1}")
    A("    s_add_u32 s39, s39, s3")
    if CPT == 1:
        A("    s_lshl_b32 s3, s36, 10")
        A("    s_add_u32 s39, s39, s3")
    else:
        A(f"    s_and_b32 s3, s36, {WPC-1}")
        A("    s_lshl_b32 s3, s3, 10")
        A("    s_add_u32 s39, s39, s3")
        A(f"    s_lshr_b32 s37, s36, {WPC.bit_length()-1}")
        A("    s_lshl_b32 s3, s37, 17")
        A("    s_add_u32 s39, s39, s3")
    A("    v_lshl_add_u32 v1, v0, 4, s39")
    A(f"    s_mov_b32 s18, {32*GB}")
    A("    s_mov_b32 s19, 0x20000")
    A(f"    s_mov_b32 s22, {32*GB}")
    A("    s_mov_b32 s23, 0x20000")
    A(f"    v_xor_b32 v{VA2}, 0x2000, v1")
    if DMA:
        A(f"    s_mul_i32 s42, s36, {RING*1024}")
        A(f"    s_add_u32 s42, s42, 2048")
        A(f"    v_lshl_add_u32 v{VA2+1}, v0, 4, s42")
    nw = Tc * 512
    if CLS is None: classes = [(W, W, X0, W2, W2AT)]
    else: classes = [tuple(int(y) for y in x.split('.')) for x in str(CLS).split('_')]
    ncl = len(classes)
    if RBK:
        assert K == 2 and ncl == 1
        classes = classes * 2
        A("    s_bitcmp1_b32 s38, 0")
        A("    s_cbranch_scc1 L_class1")
    for cl in range(1, ncl):
        A(f"    s_and_b32 s3, s41, {ncl-1}")
        A(f"    s_cmp_eq_u32 s3, {cl}")
        A(f"    s_cbranch_scc1 L_class{cl}")
    def data_path(cl, W0, W, X0, W2, W2AT):
        pend = []
        tiles = []
        for k in range(K):
            for j in range(Tc):
                if k in RBK and j == RBC:
                    if cl == RBPAR: tiles += [(k, j, 0), (k, j, 1)]
                else:
                    tiles.append((k, j, (j & 1) if ALT else 0))
        T = len(tiles)
        X0 = X0 + T - 28
        first = [i for i in range(T) if i == 0 or tiles[i][0] != tiles[i-1][0]]
        last = [i for i in range(T) if i == T - 1 or tiles[i][0] != tiles[i+1][0]]
        def wait_for(op):
            if op not in pend: return
            idx = pend.index(op); n = len(pend) - 1 - idx
            A(f"    s_waitcnt vmcnt({n})")
            del pend[:idx + 1]
        def va(i): return f"v{VA2}" if tiles[i][2] else "v1"
        def so(i):
            o = tiles[i][0] * GPC * GB + tiles[i][1] * CPT * 131072
            if o == 0: return "0"
            A(f"    s_mov_b32 s3, {o}")
            return "s3"
        def ld(i):
            r = D0 + 4 * i
            if DMA:
                A(f"    s_add_u32 m0, s42, {(i % RING) * 1024}")
                o = so(i)
                if o == "0": A("    s_nop 0")
                A(f"    buffer_load_dwordx4 {va(i)}, s[16:19], {o} offen {LDNT} lds"); pend.append(('L', i))
                return
            o = so(i)
            A(f"    buffer_load_dwordx4 v[{r}:{r+3}], {va(i)}, s[16:19], {o} offen {LDNT}".rstrip()); pend.append(('L', i))
        def stats(i):
            r = D0 + 4 * i
            fst = i in first
            if fst:
                A(f"    v_readfirstlane_b32 s46, v{r}")
            for q in range(4):
                A(f"    v_lshlrev_b32 v{16+2*q}, 16, v{r+q}")
                A(f"    v_and_b32 v{17+2*q}, s40, v{r+q}")
                if fst and q == 0: A(f"    s_lshl_b32 s46, s46, 16                ; pivot")
            for q in range(4):
                d = (8 + 2 * q) if (fst and q < 2) else (16 + 2 * q)
                A(f"    v_pk_add_f32 v[{d}:{d+1}], v[{16+2*q}:{17+2*q}], s[46:47] op_sel_hi:[1,0] neg_lo:[0,1] neg_hi:[0,1]")
            for q in range(4):
                a1 = 8 + 2 * (q & 1); a2 = 12 + 2 * (q & 1)
                if fst and q < 2:
                    A(f"    v_pk_mul_f32 v[{a2}:{a2+1}], v[{a1}:{a1+1}], v[{a1}:{a1+1}]")
                else:
                    A(f"    v_pk_add_f32 v[{a1}:{a1+1}], v[{a1}:{a1+1}], v[{16+2*q}:{17+2*q}]")
                    A(f"    v_pk_fma_f32 v[{a2}:{a2+1}], v[{16+2*q}:{17+2*q}], v[{16+2*q}:{17+2*q}], v[{a2}:{a2+1}]")
        def post(k):
            nw = 512 * (last[k] - first[k] + 1)
            A("    v_pk_add_f32 v[8:9], v[8:9], v[10:11]")
            A("    v_pk_add_f32 v[12:13], v[12:13], v[14:15]")
            A("    s_nop 0")
            A("    v_add_f32 v8, v8, v9")
            A("    v_add_f32 v12, v12, v13")
            reduce2(8, 12)
            A(f"    v_mul_f32 v9, {hex(f2u(1.0/nw))}, v8")
            A("    s_mov_b32 exec_lo, 0")
            A("    s_mov_b32 exec_hi, 0x80000000")
            A(f"    v_fma_f32 v11, -v9, v8, v12            ; M2")
            A(f"    v_add_f32 v10, s46, v9                 ; mean")
            A(f"    ds_write_b64 v4, v[10:11] offset:{k*64}")
            A(f"    ds_add_u32 v5, v6 offset:{CNT+4*k}")
            A("    s_mov_b64 exec, -1")
        def get_scale(k):
            A(f"L_flag{k}_{cl}:")
            A(f"    ds_read_b32 v7, v5 offset:{FLG+4*k}")
            A(f"    ds_read_b64 v[2:3], v0 offset:{SC+128*k}")
            A("    s_waitcnt lgkmcnt(0)")
            A("    v_readfirstlane_b32 s3, v7")
            A("    s_cmp_lg_u32 s3, 0")
            A(f"    s_cbranch_scc1 L_flagok{k}_{cl}")
            A(f"    s_sleep {FSLEEP}")
            A(f"    s_branch L_flag{k}_{cl}")
            A(f"L_flagok{k}_{cl}:")
            if STAMP and k == 0: A("    s_memrealtime s[86:87]")
            if STAMP and k == K - 1: A("    s_memrealtime s[88:89]")
        def norm_store(i):
            if i in first: get_scale(tiles[i][0])
            c = tiles[i][1] * CPT
            r = D0 + 4 * i
            t = 16 + 8 * (i & 1)
            sp = 48 + 2 * (i & 1)
            A(f"    v_readlane_b32 s{sp}, v2, {c}")
            A(f"    v_readlane_b32 s{sp+1}, v3, {c}")
            for q in range(4):
                A(f"    v_lshlrev_b32 v{t+2*q}, 16, v{r+q}")
                A(f"    v_and_b32 v{t+1+2*q}, s40, v{r+q}")
            for q in range(4):
                A(f"    v_pk_fma_f32 v[{t+2*q}:{t+1+2*q}], v[{t+2*q}:{t+1+2*q}], s[{sp}:{sp+1}], s[{sp}:{sp+1}] op_sel:[0,0,1] op_sel_hi:[1,0,1]")
            for q in range(4):
                A(f"    v_cvt_pk_bf16_f32 v{r+q}, v{t+2*q}, v{t+1+2*q}")
            o = so(i)
            st = [p for p in pend if p[0] == 'S']
            if SW and i < SWN and len(st) >= SW: wait_for(st[len(st)-SW])
            pol = LASTNT if (LASTNT is not None and i >= T - NLAST) else STNT
            A(f"    buffer_store_dwordx4 v[{r}:{r+3}], {va(i)}, s[20:23], {o} offen {pol}".rstrip()); pend.append(('S', i))
        A("    s_waitcnt lgkmcnt(0)")
        A("    s_mov_b32 s16, s4")
        A("    s_mov_b32 s17, s5")
        nxt = 0
        for i in range(W0): ld(i); nxt += 1
        A("    s_mov_b32 s20, s10")
        A("    s_mov_b32 s21, s11")
        if CPT > 1: A("    v_add_u32 v0, s37, v0")
        A("    s_lshl_b32 s3, s36, 3")
        A("    v_mov_b32 v4, s3")
        A("    v_mov_b32 v5, 0")
        A("    v_mov_b32 v6, 1")
        A("    v_lshlrev_b32 v0, 3, v0")
        A("    s_barrier")
        done = 0
        if SCHED is not None: sched = [int(ch) for ch in str(SCHED)]
        else: sched = [R if i >= X0 else 0 for i in range(T)]
        for i in range(T):
            wait_for(('L', i))
            if STAMP and i == 0: A("    s_memrealtime s[82:83]")
            if DMA: A(f"    ds_read_b128 v[{D0+4*i}:{D0+4*i+3}], v{VA2+1} offset:{(i % RING) * 1024}")
            win = min(W2, W + 2 * (i - W2AT + 1)) if (W2 and i >= W2AT) else min(W, W0 + i)
            while nxt < T and nxt <= i + win: ld(nxt); nxt += 1
            if DMA: A("    s_waitcnt lgkmcnt(0)")
            stats(i)
            if i in last: post(tiles[i][0])
            for _ in range(sched[i]):
                if last[tiles[done][0]] <= i:
                    norm_store(done); done += 1
        if STAMP: A("    s_memrealtime s[84:85]")
        while done < T: norm_store(done); done += 1
        if STAMP: A("    s_branch L_stamp")
        else: A("    s_endpgm")
    for cl, pr in enumerate(classes):
        if cl: A(f"L_class{cl}:")
        data_path(cl, *pr)
    A("L_service:")
    if SPRIO: A(f"    s_setprio {SPRIO}")
    A("    v_mov_b32 v4, 0")
    A("    v_mov_b32 v5, 0")
    A("    v_mov_b32 v6, 0")
    A("    v_mov_b32 v7, 0")
    A(f"    ds_write_b128 v4, v[4:7] offset:{CNT}")
    A(f"    ds_write_b128 v4, v[4:7] offset:{FLG}")
    A("    s_mov_b32 s30, 896")
    A("    s_mov_b32 s31, 0x20000")
    A("    s_mov_b32 s34, 896")
    A("    s_mov_b32 s35, 0x20000")
    A("    s_mul_i32 s3, s41, 28")
    A("    v_lshl_add_u32 v8, v0, 1, s3")
    A("    s_lshl_b32 s14, s41, 7")
    A("    s_add_u32 s14, s14, 0x80000")
    A(f"    s_mul_i32 s3, s41, {TAB}")
    A("    s_lshr_b32 s15, s38, 2")
    A(f"    s_mul_i32 s15, s15, {PS}")
    A("    s_and_b32 s16, s38, 3")
    A("    s_lshl_b32 s16, s16, 4")
    A("    s_add_u32 s15, s15, s16")
    A("    s_add_u32 s3, s3, 0x400000")
    A(f"    s_mul_i32 s24, s41, {GB}")
    A("    s_waitcnt lgkmcnt(0)")
    A("    s_barrier")
    A("    s_load_dwordx2 s[20:21], s[12:13], s14 ; epoch")
    for x, y in [(28, 6), (29, 7), (32, 8), (33, 9)]: A(f"    s_mov_b32 s{x}, s{y}")
    for k in range(K):
        A(f"    buffer_load_ushort v{20+2*k}, v8, s[28:31], 0 offen offset:{k*GPC*28}")
        A(f"    buffer_load_ushort v{21+2*k}, v8, s[32:35], 0 offen offset:{k*GPC*28}")
    A("    v_lshlrev_b32 v1, 3, v0                ; lane*8")
    A("    s_add_u32 s26, s12, s3")
    A("    s_addc_u32 s27, s13, 0")
    A("    s_mov_b32 s16, s4")
    A("    s_mov_b32 s17, s5")
    A(f"    s_mov_b32 s18, {32*GB}")
    A("    s_mov_b32 s19, 0x20000")
    if TLBW:
        A("    v_lshrrev_b32 v30, 1, v0")
        A(f"    s_mov_b32 s3, {GPC*GB}")
        A("    v_mul_lo_u32 v30, v30, s3")
        A("    v_and_b32 v31, 1, v0")
        A(f"    v_mul_u32_u24 v31, {GB-128}, v31")
        A("    v_add3_u32 v30, v30, v31, s24")
        A(f"    s_mov_b64 exec, {hex((1<<(2*K))-1)}")
        A("    buffer_load_dword v31, v30, s[16:19], 0 offen nt")
        A("    s_mov_b32 s28, s10")
        A("    s_mov_b32 s29, s11")
        A(f"    s_mov_b32 s30, {32*GB}")
        A("    buffer_load_dword v29, v30, s[28:31], 0 offen nt")
        A("    s_mov_b64 exec, -1")
    if RBK:
        A(f"    s_mov_b32 s3, {hex(f2u(float((Tc + (1 if RBPAR == 0 else -1)) * 512)))}")
        A("    s_bitcmp1_b32 s38, 0")
        A(f"    s_cselect_b32 s3, {hex(f2u(float((Tc + (1 if RBPAR == 1 else -1)) * 512)))}, s3")
        A("    v_mov_b32 v28, s3")
    A("    v_mov_b32 v5, 1")
    A("    s_mov_b32 s33, 0")
    if STAMP: A("    s_mov_b32 s22, s80")
    A("    s_waitcnt lgkmcnt(0)")
    A("    s_mul_i32 s20, s20, 0x9E3779B1")
    A("    s_add_u32 s20, s20, 0x7F4A7C15         ; tag1")
    A("    s_mul_i32 s21, s21, 0x85EBCA6D")
    A("    s_add_u32 s21, s21, 0x2545F491         ; tag2")
    for k in range(K):
        A(f"L_wait{k}:")
        A(f"    ds_read_b32 v6, v4 offset:{CNT+4*k}")
        A(f"    ds_read_b64 v[16:17], v1 offset:{64*k}")
        A("    s_waitcnt lgkmcnt(0)")
        A("    v_readfirstlane_b32 s3, v6")
        A("    s_cmp_eq_u32 s3, 8")
        A(f"    s_cbranch_scc1 L_got{k}")
        A(f"    s_sleep {LSLEEP}")
        A(f"    s_branch L_wait{k}")
        A(f"L_got{k}:")
        if STAMP and DIAG < 0 and k in (0, K-1): A(f"    s_memrealtime s[{4+4*(k>0)}:{5+4*(k>0)}]")
        if STAMP and DIAG == k: A("    s_memrealtime s[4:5]")
        A("    s_mov_b64 exec, 0xff")
        A("    v_mov_b32 v8, v16")
        reduce2(8, None, ("row_shr:1", "row_shr:2", "row_shr:4"))
        A(f"    v_mul_f32 v8, {hex(f2u(0.125))}, v8")
        A("    s_mov_b32 s29, s20")
        A("    v_readlane_b32 s28, v8, 7")
        A("    s_mov_b32 s31, s21")
        A(f"    s_add_u32 s3, s15, {GPC*TAB*k}")
        A("    v_subrev_f32 v6, s28, v16")
        if k in RBK: A("    v_mul_f32 v9, v28, v6")
        else: A(f"    v_mul_f32 v9, {hex(f2u(float(nw)))}, v6")
        A("    v_fma_f32 v14, v9, v6, v17")
        reduce2(14, None, ("row_shr:1", "row_shr:2", "row_shr:4"))
        A(f"    s_add_u32 s23, s15, {GPC*TAB*k+8}")
        A("    v_readlane_b32 s30, v14, 7")
        A("    s_mov_b64 exec, -1")
        A(f"    s_mov_b32 s25, {SPINMAX}")
        A("    s_nop 1")
        if not NOPOLL:
            A("    s_atomic_swap_x2 s[28:29], s[26:27], s3")
            A("    s_atomic_swap_x2 s[30:31], s[26:27], s23")
        for b in range(NB):
            A(f"L_poll{k}_{b}:")
            for j in range(4):
                A(f"    s_load_dwordx16 s[{36+16*j}:{51+16*j}], s[26:27], {hex(GPC*TAB*k+PS*(4*b+j))} glc")
            A("    s_waitcnt lgkmcnt(0)")
            if not NOPOLL:
                A("    s_xor_b32 s3, s37, s20")
                for j in range(16):
                    if j:
                        A(f"    s_xor_b32 s23, s{37+4*j}, s20")
                        A(f"    s_or_b32 s3, s3, s23")
                    A(f"    s_xor_b32 s23, s{39+4*j}, s21")
                    A(f"    s_or_b32 s3, s3, s23")
                A(f"    s_cbranch_scc0 L_ready{k}_{b}")
                if SLEEP: A(f"    s_sleep {SLEEP}")
                A("    s_sub_u32 s25, s25, 1")
                A("    s_cmp_lg_u32 s25, 0")
                A(f"    s_cbranch_scc1 L_poll{k}_{b}")
                A(f"    s_mov_b32 s32, {k*GPC*GB}")
                A(f"    s_getpc_b64 s[34:35]")
                A(f"L_ret{k}_{b}:")
                A(f"    s_add_u32 s34, s34, L_fin{k}-L_ret{k}_{b}")
                A(f"    s_addc_u32 s35, s35, 0")
                A(f"    s_branch L_fallback")
            A(f"L_ready{k}_{b}:")
            if STAMP and DIAG == k and b == NB - 1:
                A("    s_memrealtime s[6:7]")
                A(f"    s_sub_u32 s101, {SPINMAX}, s25")
            if b == 0:
                A("    v_mov_b32 v9, s36                      ; reference")
                A("    v_mov_b32 v10, 0")
                A("    v_mov_b32 v11, 0")
                A("    v_mov_b32 v12, 0")
                A("    v_mov_b32 v13, 0")
                A("    v_mov_b32 v14, s38")
                A("    v_mov_b32 v15, 0")
            for j in range(16):
                if b == 0 and j == 0: continue
                p = j & 1
                A(f"    v_sub_f32 v{16+p}, s{36+4*j}, v9")
                A(f"    v_add_f32 v{14+p}, s{38+4*j}, v{14+p}")
                A(f"    v_add_f32 v{10+p}, v{16+p}, v{10+p}")
                A(f"    v_fma_f32 v{12+p}, v{16+p}, v{16+p}, v{12+p}")
        A("    s_mov_b32 s33, 1")
        if k in RBK:
            we = (Tc + (1 if RBPAR == 0 else -1)) / Tc; wo = (Tc + (1 if RBPAR == 1 else -1)) / Tc
            A(f"    v_mul_f32 v10, {hex(f2u(we))}, v10")
            A(f"    v_mul_f32 v11, {hex(f2u(wo))}, v11")
            A(f"    v_mul_f32 v12, {hex(f2u(we))}, v12")
            A(f"    v_mul_f32 v13, {hex(f2u(wo))}, v13")
        A("    v_add_f32 v10, v10, v11")
        A("    v_add_f32 v12, v12, v13")
        A("    v_add_f32 v14, v14, v15")
        A(f"    v_mul_f32 v10, {hex(f2u(1.0/MEM))}, v10")
        A(f"    v_mul_f32 v12, {hex(f2u(1.0/MEM))}, v12")
        A(f"    v_mul_f32 v8, {hex(f2u(1.0/N))}, v14")
        A("    v_fma_f32 v12, -v10, v10, v12")
        A("    v_add_f32 v9, v9, v10")
        A("    v_add_f32 v8, v8, v12                  ; var")
        A(f"L_fin{k}:")
        if STAMP and DIAG < 0 and k in (0, K-1): A(f"    s_memrealtime s[{6+4*(k>0)}:{7+4*(k>0)}]")
        if STAMP and DIAG == k: A("    s_memrealtime s[8:9]")
        A("    v_max_f32 v8, 0, v8")
        A("    v_cvt_pk_bf16_f32 v12, v9, v9")
        A("    v_lshlrev_b32 v12, 16, v12")
        A("    v_sub_f32 v13, v9, v12")
        A("    v_fma_f32 v8, v13, v13, v8             ; E[(x-mu_b)^2]")
        A("    v_cvt_pk_bf16_f32 v8, v8, v8")
        A("    v_lshlrev_b32 v8, 16, v8")
        A(f"    v_add_f32 v8, {hex(f2u(1e-5))}, v8")
        A("    v_cvt_pk_bf16_f32 v8, v8, v8")
        A("    v_lshlrev_b32 v8, 16, v8")
        A("    v_sqrt_f32 v8, v8")
        A("    s_waitcnt vmcnt(0)")
        A("    v_cvt_pk_bf16_f32 v8, v8, v8")
        A("    v_lshlrev_b32 v8, 16, v8")
        A("    v_rcp_f32 v8, v8")
        A(f"    v_lshlrev_b32 v6, 16, v{20+2*k}")
        A(f"    v_lshlrev_b32 v7, 16, v{21+2*k}")
        A("    v_mul_f32 v6, v8, v6                   ; scale_c")
        A("    v_fma_f32 v7, -v12, v6, v7             ; shift_c")
        A("    s_mov_b64 exec, 0xffff")
        A(f"    ds_write_b64 v1, v[6:7] offset:{SC+128*k}")
        A(f"    ds_write_b32 v4, v5 offset:{FLG+4*k}")
        if STAMP and DIAG == k: A("    s_memrealtime s[10:11]")
        A("    s_mov_b64 exec, -1")
    A("    s_cmp_eq_u32 s33, 0")
    A("    s_cbranch_scc1 L_svc_done")
    A("    s_mov_b32 s16, s12")
    A("    s_mov_b32 s17, s13")
    A("    s_mov_b32 s18, 0x100000")
    A("    v_mov_b32 v6, s20")
    A("    v_mov_b32 v7, s21")
    A("    v_mov_b32 v8, s14")
    A("    s_mov_b64 exec, 1")
    if not NOPOLL: A("    buffer_store_dwordx2 v[6:7], v8, s[16:19], 0 offen sc1")
    A("L_svc_done:")
    if STAMP:
        A("    s_waitcnt lgkmcnt(0)")
        A("    s_mov_b32 s80, s22")
        A("    s_mov_b32 s82, s4")
        A("    s_mov_b32 s84, s6")
        A("    s_mov_b32 s86, s8")
        A("    s_mov_b32 s88, s10")
        A("    s_mov_b32 s36, 8")
        A("    s_branch L_stamp")
    else:
        A("    s_endpgm")
    if not NOPOLL:
        A("L_fallback:")
        A("    s_add_u32 s32, s32, s24")
        A("    v_lshl_add_u32 v30, v0, 4, s32")
        A("    s_mov_b32 s23, 0xffff0000")
        A("    buffer_load_dword v31, v30, s[16:19], 0 offen")
        for z in range(8, 16): A(f"    v_mov_b32 v{z}, 0")
        A("    s_mov_b32 s3, 0")
        A("    s_waitcnt vmcnt(0)")
        A("    v_readfirstlane_b32 s28, v31")
        A("    s_lshl_b32 s28, s28, 16                ; pivot")
        A("L_fb_loop:")
        for j in range(4):
            A(f"    buffer_load_dwordx4 v[{32+4*j}:{35+4*j}], v30, s[16:19], s3 offen offset:{1024*j}")
        A("    s_waitcnt vmcnt(0)")
        for q in range(16):
            A(f"    v_lshlrev_b32 v{48+2*q}, 16, v{32+q}")
            A(f"    v_and_b32 v{49+2*q}, s23, v{32+q}")
        for q in range(16):
            A(f"    v_pk_add_f32 v[{48+2*q}:{49+2*q}], v[{48+2*q}:{49+2*q}], s[28:29] op_sel_hi:[1,0] neg_lo:[0,1] neg_hi:[0,1]")
        for q in range(16):
            a1 = 8 + 2 * (q & 1); a2 = 12 + 2 * (q & 1)
            A(f"    v_pk_add_f32 v[{a1}:{a1+1}], v[{a1}:{a1+1}], v[{48+2*q}:{49+2*q}]")
            A(f"    v_pk_fma_f32 v[{a2}:{a2+1}], v[{48+2*q}:{49+2*q}], v[{48+2*q}:{49+2*q}], v[{a2}:{a2+1}]")
        A("    s_add_u32 s3, s3, 4096")
        A(f"    s_cmp_lt_u32 s3, {GB}")
        A("    s_cbranch_scc1 L_fb_loop")
        A("    v_pk_add_f32 v[8:9], v[8:9], v[10:11]")
        A("    v_pk_add_f32 v[12:13], v[12:13], v[14:15]")
        A("    s_nop 0")
        A("    v_add_f32 v8, v8, v9")
        A("    v_add_f32 v12, v12, v13")
        reduce2(8, 12)
        A("    s_nop 0")
        A("    v_readlane_b32 s29, v8, 63")
        A("    v_readlane_b32 s30, v12, 63")
        A(f"    v_mov_b32 v10, {hex(f2u(1.0/N))}")
        A("    s_nop 0")
        A("    v_mul_f32 v11, s29, v10")
        A("    v_mul_f32 v8, s30, v10")
        A("    v_fma_f32 v8, -v11, v11, v8            ; var")
        A("    v_add_f32 v9, s28, v11                 ; mean")
        A("    s_setpc_b64 s[34:35]")
    if STAMP:
        A("L_stamp:")
        A("    s_mov_b64 exec, -1")
        A("    s_waitcnt vmcnt(0)")
        A("    s_memrealtime s[90:91]")
        A("    s_getreg_b32 s92, hwreg(HW_REG_HW_ID)" if DIAG < 0 else "    s_mov_b32 s92, s101")
        A("    s_getreg_b32 s93, hwreg(HW_REG_XCC_ID)")
        A("    s_mov_b32 s24, s12")
        A("    s_mov_b32 s25, s13")
        A("    s_mov_b32 s26, 0x1000000")
        A("    s_mov_b32 s27, 0x20000")
        A("    s_mul_i32 s3, s2, 9")
        A("    s_add_u32 s3, s3, s36")
        A("    s_lshl_b32 s3, s3, 6")
        A("    s_add_u32 s3, s3, 0x90000")
        A("    v_mov_b32 v8, s3")
        A("    s_waitcnt lgkmcnt(0)")
        for k, sr in enumerate([80, 82, 84, 86, 88, 90, 92, 93]): A(f"    v_mov_b32 v{12+k}, s{sr}")
        A("    s_mov_b64 exec, 1")
        A("    buffer_store_dwordx4 v[12:15], v8, s[24:27], 0 offen")
        A("    buffer_store_dwordx4 v[16:19], v8, s[24:27], 0 offen offset:16")
    A("L_end:")
    A("    s_endpgm")
    A('.section .rodata,"a"'); A(".p2align 6")
    A(f".amdhsa_kernel {name}_kernel")
    A(f"  .amdhsa_next_free_vgpr {nvgpr}")
    A(f"  .amdhsa_next_free_sgpr 102")
    A(f"  .amdhsa_accum_offset {(nvgpr+3)//4*4}")
    A("  .amdhsa_group_segment_fixed_size 0")
    A("  .amdhsa_kernarg_size 48")
    A("  .amdhsa_user_sgpr_count 2")
    A("  .amdhsa_user_sgpr_kernarg_segment_ptr 1")
    A("  .amdhsa_system_sgpr_workgroup_id_x 1")
    A("  .amdhsa_float_denorm_mode_32 3")
    A(".end_amdhsa_kernel")
    return "\n".join(L) + "\n"

if __name__ == "__main__":
    kw = {}; out = None
    for a in sys.argv[1:]:
        k, v = a.split("=", 1)
        if k == "out": out = v; continue
        if k not in ("SCHED", "CLS", "RBK"):
            try: v = int(v)
            except ValueError: pass
        kw[k] = v
    s = gen(**kw)
    if out: open(out, "w").write(s)
    else: sys.stdout.write(s)
```

```python
import sys, struct
def f2u(f): return struct.unpack('<I', struct.pack('<f', f))[0]

def gen(K=4, W=4, X0=14, R=1, LDNT="nt", STNT="sc0 sc1", STAMP=0, SLEEP=1, LSLEEP=1, FSLEEP=1, SPRIO=3, ALT=1,
        SPINMAX=3000, NOPOLL=0, SW=0, W2=0, W2AT=99, name="standalone__groupnorm__prompt", LASTNT=None, NLAST=0,
        SCHED=None, SLOT=16, DIAG=-1, CLS=None, PS=64, SWN=99, TLBW=0, DMA=0, RBK="", RBC=7, RBPAR=0, PRB=0):
    L = []; A = L.append
    GB = 14 * 131072
    N = 14 * 65536
    MEM = 8 * K
    GPC = 32 // K
    Tc = 28 // K
    T = 28
    CPT = K // 2
    WPC = 8 // CPT
    D0 = 32
    RBK = [int(ch) for ch in str(RBK)]
    VA2 = D0 + 4 * (T + len(RBK))
    nvgpr = VA2 + 2
    lgM = MEM.bit_length() - 1
    TAB = (MEM // 4) * PS
    NB = MEM // 16
    CNT = 256; FLG = 272; SC = 512
    hdr = open('standalone__groupnorm__prompt.s.ref').read().split('\n')
    for ln in hdr:
        if ln.startswith('; @launch'): break
        A(ln)
    RING = 0
    if DMA: RING = max(W, W2) + 1
    A(f"; @launch grid=(256,1,1) block=(576,1,1) lds={2048 + 8*RING*1024}")
    A('.amdgcn_target "amdgcn-amd-amdhsa--gfx950"')
    A(".text"); A(f".globl {name}_kernel"); A(".p2align 8"); A(f".type {name}_kernel,@function")
    A(f"{name}_kernel:")
    A("    s_cmp_ge_u32 s2, 256")
    A("    s_cbranch_scc1 L_end")
    A("    s_load_dwordx8 s[4:11], s[0:1], 0      ; x, g, b, out")
    A("    s_load_dwordx2 s[12:13], s[0:1], 40    ; ws")
    if STAMP: A("    s_memrealtime s[80:81]")
    A("    v_lshrrev_b32 v1, 6, v0")
    A("    v_and_b32 v0, 63, v0                   ; lane")
    A("    v_readfirstlane_b32 s36, v1")
    A(f"    s_lshr_b32 s41, s2, {lgM}")
    A(f"    s_and_b32 s38, s2, {MEM-1}                 ; member")
    A("    s_cmp_eq_u32 s36, 8")
    A("    s_cbranch_scc1 L_service")
    def reduce2(a, b, steps=("row_shr:1", "row_shr:2", "row_shr:4", "row_shr:8", "B15", "B31")):
        for m in steps:
            if m == "B15": mm = "row_bcast:15 row_mask:0xa bank_mask:0xf"
            elif m == "B31": mm = "row_bcast:31 row_mask:0xc bank_mask:0xf"
            else: mm = m + " row_mask:0xf bank_mask:0xf bound_ctrl:0"
            A("    s_nop 0" if b is not None else "    s_nop 1")
            A(f"    v_add_f32_dpp v{a}, v{a}, v{a} {mm}")
            if b is not None: A(f"    v_add_f32_dpp v{b}, v{b}, v{b} {mm}")
    A("    s_mov_b32 s40, 0xffff0000")
    A(f"    s_mul_i32 s39, s41, {GB}")
    A(f"    s_lshl_b32 s3, s38, {(WPC*1024).bit_length()-1}")
    A("    s_add_u32 s39, s39, s3")
    if CPT == 1:
        A("    s_lshl_b32 s3, s36, 10")
        A("    s_add_u32 s39, s39, s3")
    else:
        A(f"    s_and_b32 s3, s36, {WPC-1}")
        A("    s_lshl_b32 s3, s3, 10")
        A("    s_add_u32 s39, s39, s3")
        A(f"    s_lshr_b32 s37, s36, {WPC.bit_length()-1}")
        A("    s_lshl_b32 s3, s37, 17")
        A("    s_add_u32 s39, s39, s3")
    A("    v_lshl_add_u32 v1, v0, 4, s39")
    A(f"    s_mov_b32 s18, {32*GB}")
    A("    s_mov_b32 s19, 0x20000")
    A(f"    s_mov_b32 s22, {32*GB}")
    A("    s_mov_b32 s23, 0x20000")
    A(f"    v_xor_b32 v{VA2}, 0x2000, v1")
    if DMA:
        A(f"    s_mul_i32 s42, s36, {RING*1024}")
        A(f"    s_add_u32 s42, s42, 2048")
        A(f"    v_lshl_add_u32 v{VA2+1}, v0, 4, s42")
    nw = Tc * 512
    if CLS is None: classes = [(W, W, X0, W2, W2AT)]
    else: classes = [tuple(int(y) for y in x.split('.')) for x in str(CLS).split('_')]
    ncl = len(classes)
    if RBK:
        assert K == 2 and ncl == 1
        classes = classes * 2
        A("    s_bitcmp1_b32 s38, 0")
        A("    s_cbranch_scc1 L_class1")
    for cl in range(1, ncl):
        A(f"    s_and_b32 s3, s41, {ncl-1}")
        A(f"    s_cmp_eq_u32 s3, {cl}")
        A(f"    s_cbranch_scc1 L_class{cl}")
    def data_path(cl, W0, W, X0, W2, W2AT):
        pend = []
        tiles = []
        for k in range(K):
            for j in range(Tc):
                if k in RBK and j == RBC:
                    if cl == RBPAR: tiles += [(k, j, 0), (k, j, 1)]
                else:
                    tiles.append((k, j, (j & 1) if ALT else 0))
        T = len(tiles)
        X0 = X0 + T - 28
        first = [i for i in range(T) if i == 0 or tiles[i][0] != tiles[i-1][0]]
        last = [i for i in range(T) if i == T - 1 or tiles[i][0] != tiles[i+1][0]]
        def wait_for(op):
            if op not in pend: return
            idx = pend.index(op); n = len(pend) - 1 - idx
            A(f"    s_waitcnt vmcnt({n})")
            del pend[:idx + 1]
        def va(i): return f"v{VA2}" if tiles[i][2] else "v1"
        def so(i):
            o = tiles[i][0] * GPC * GB + tiles[i][1] * CPT * 131072
            if o == 0: return "0"
            A(f"    s_mov_b32 s3, {o}")
            return "s3"
        def ld(i):
            r = D0 + 4 * i
            if DMA:
                A(f"    s_add_u32 m0, s42, {(i % RING) * 1024}")
                o = so(i)
                if o == "0": A("    s_nop 0")
                A(f"    buffer_load_dwordx4 {va(i)}, s[16:19], {o} offen {LDNT} lds"); pend.append(('L', i))
                return
            o = so(i)
            A(f"    buffer_load_dwordx4 v[{r}:{r+3}], {va(i)}, s[16:19], {o} offen {LDNT}".rstrip()); pend.append(('L', i))
        def stats(i):
            r = D0 + 4 * i
            fst = i in first
            if fst:
                A(f"    v_readfirstlane_b32 s46, v{r}")
            for q in range(4):
                A(f"    v_lshlrev_b32 v{16+2*q}, 16, v{r+q}")
                A(f"    v_and_b32 v{17+2*q}, s40, v{r+q}")
                if fst and q == 0: A(f"    s_lshl_b32 s46, s46, 16                ; pivot")
            for q in range(4):
                d = (8 + 2 * q) if (fst and q < 2) else (16 + 2 * q)
                A(f"    v_pk_add_f32 v[{d}:{d+1}], v[{16+2*q}:{17+2*q}], s[46:47] op_sel_hi:[1,0] neg_lo:[0,1] neg_hi:[0,1]")
            for q in range(4):
                a1 = 8 + 2 * (q & 1); a2 = 12 + 2 * (q & 1)
                if fst and q < 2:
                    A(f"    v_pk_mul_f32 v[{a2}:{a2+1}], v[{a1}:{a1+1}], v[{a1}:{a1+1}]")
                else:
                    A(f"    v_pk_add_f32 v[{a1}:{a1+1}], v[{a1}:{a1+1}], v[{16+2*q}:{17+2*q}]")
                    A(f"    v_pk_fma_f32 v[{a2}:{a2+1}], v[{16+2*q}:{17+2*q}], v[{16+2*q}:{17+2*q}], v[{a2}:{a2+1}]")
        def post(k):
            nw = 512 * (last[k] - first[k] + 1)
            A("    v_pk_add_f32 v[8:9], v[8:9], v[10:11]")
            A("    v_pk_add_f32 v[12:13], v[12:13], v[14:15]")
            A("    s_nop 0")
            A("    v_add_f32 v8, v8, v9")
            A("    v_add_f32 v12, v12, v13")
            reduce2(8, 12)
            A(f"    v_mul_f32 v9, {hex(f2u(1.0/nw))}, v8")
            A("    s_mov_b32 exec_lo, 0")
            A("    s_mov_b32 exec_hi, 0x80000000")
            A(f"    v_fma_f32 v11, -v9, v8, v12            ; M2")
            A(f"    v_add_f32 v10, s46, v9                 ; mean")
            A(f"    ds_write_b64 v4, v[10:11] offset:{k*64}")
            A(f"    ds_add_u32 v5, v6 offset:{CNT+4*k}")
            A("    s_mov_b64 exec, -1")
        def get_scale(k):
            A(f"L_flag{k}_{cl}:")
            A(f"    ds_read_b32 v7, v5 offset:{FLG+4*k}")
            A(f"    ds_read_b64 v[2:3], v0 offset:{SC+128*k}")
            A("    s_waitcnt lgkmcnt(0)")
            A("    v_readfirstlane_b32 s3, v7")
            A("    s_cmp_lg_u32 s3, 0")
            A(f"    s_cbranch_scc1 L_flagok{k}_{cl}")
            A(f"    s_sleep {FSLEEP}")
            A(f"    s_branch L_flag{k}_{cl}")
            A(f"L_flagok{k}_{cl}:")
            if STAMP and k == 0: A("    s_memrealtime s[86:87]")
            if STAMP and k == K - 1: A("    s_memrealtime s[88:89]")
        def norm_store(i):
            if i in first: get_scale(tiles[i][0])
            c = tiles[i][1] * CPT
            r = D0 + 4 * i
            t = 16 + 8 * (i & 1)
            sp = 48 + 2 * (i & 1)
            A(f"    v_readlane_b32 s{sp}, v2, {c}")
            A(f"    v_readlane_b32 s{sp+1}, v3, {c}")
            for q in range(4):
                A(f"    v_lshlrev_b32 v{t+2*q}, 16, v{r+q}")
                A(f"    v_and_b32 v{t+1+2*q}, s40, v{r+q}")
            for q in range(4):
                A(f"    v_pk_fma_f32 v[{t+2*q}:{t+1+2*q}], v[{t+2*q}:{t+1+2*q}], s[{sp}:{sp+1}], s[{sp}:{sp+1}] op_sel:[0,0,1] op_sel_hi:[1,0,1]")
            for q in range(4):
                A(f"    v_cvt_pk_bf16_f32 v{r+q}, v{t+2*q}, v{t+1+2*q}")
            o = so(i)
            st = [p for p in pend if p[0] == 'S']
            if SW and i < SWN and len(st) >= SW: wait_for(st[len(st)-SW])
            pol = LASTNT if (LASTNT is not None and i >= T - NLAST) else STNT
            A(f"    buffer_store_dwordx4 v[{r}:{r+3}], {va(i)}, s[20:23], {o} offen {pol}".rstrip()); pend.append(('S', i))
        if PRB:
            A("    s_lshr_b32 s50, s36, 2")
            A(f"    s_mul_i32 s50, s50, {GPC}")
            A("    s_add_u32 s50, s50, s41")
            A(f"    s_mul_i32 s50, s50, {GB}")
            A(f"    s_add_u32 s50, s50, {7*131072}")
            A("    s_bfe_u32 s51, s36, 0x10001")
            A("    s_lshl_b32 s51, s51, 13")
            A("    s_add_u32 s50, s50, s51")
            A("    s_lshl_b32 s51, s38, 8")
            A("    s_add_u32 s50, s50, s51")
            A("    s_bitcmp1_b32 s36, 0")
        A("    s_waitcnt lgkmcnt(0)")
        if PRB:
            A("    s_cselect_b32 s52, s10, s4")
            A("    s_cselect_b32 s53, s11, s5")
            A("    s_add_u32 s52, s52, s50")
            A("    s_addc_u32 s53, s53, 0")
            for rr in range(PRB):
                A("    s_memtime s[54:55]")
                A(f"    s_load_dword s58, s[52:53], {hex(rr*0x4000)}")
                A("    s_waitcnt lgkmcnt(0)")
                A("    s_memtime s[56:57]")
                A("    s_waitcnt lgkmcnt(0)")
                A(f"    s_sub_u32 s{60+rr}, s56, s54")
        A("    s_mov_b32 s16, s4")
        A("    s_mov_b32 s17, s5")
        nxt = 0
        for i in range(W0): ld(i); nxt += 1
        A("    s_mov_b32 s20, s10")
        A("    s_mov_b32 s21, s11")
        if CPT > 1: A("    v_add_u32 v0, s37, v0")
        A("    s_lshl_b32 s3, s36, 3")
        A("    v_mov_b32 v4, s3")
        A("    v_mov_b32 v5, 0")
        A("    v_mov_b32 v6, 1")
        A("    v_lshlrev_b32 v0, 3, v0")
        A("    s_barrier")
        done = 0
        if SCHED is not None: sched = [0] * (T - len(str(SCHED))) + [int(ch) for ch in str(SCHED)]
        else: sched = [R if i >= X0 else 0 for i in range(T)]
        for i in range(T):
            wait_for(('L', i))
            if STAMP and i == 0: A("    s_memrealtime s[82:83]")
            if DMA: A(f"    ds_read_b128 v[{D0+4*i}:{D0+4*i+3}], v{VA2+1} offset:{(i % RING) * 1024}")
            win = min(W2, W + 2 * (i - W2AT + 1)) if (W2 and i >= W2AT) else min(W, W0 + i)
            while nxt < T and nxt <= i + win: ld(nxt); nxt += 1
            if DMA: A("    s_waitcnt lgkmcnt(0)")
            stats(i)
            if i in last: post(tiles[i][0])
            for _ in range(sched[i]):
                if last[tiles[done][0]] <= i:
                    norm_store(done); done += 1
        if STAMP: A("    s_memrealtime s[84:85]")
        while done < T: norm_store(done); done += 1
        if PRB:
            A("    s_waitcnt lgkmcnt(0)")
            A("    s_lshl_b32 s61, s61, 16")
            A("    s_and_b32 s60, s60, 0xffff")
            A("    s_or_b32 s86, s60, s61")
        if STAMP: A("    s_branch L_stamp")
        else: A("    s_endpgm")
    for cl, pr in enumerate(classes):
        if cl: A(f"L_class{cl}:")
        data_path(cl, *pr)
    A("L_service:")
    if SPRIO: A(f"    s_setprio {SPRIO}")
    A("    v_mov_b32 v4, 0")
    A("    v_mov_b32 v5, 0")
    A("    v_mov_b32 v6, 0")
    A("    v_mov_b32 v7, 0")
    A(f"    ds_write_b128 v4, v[4:7] offset:{CNT}")
    A(f"    ds_write_b128 v4, v[4:7] offset:{FLG}")
    A("    s_mov_b32 s30, 896")
    A("    s_mov_b32 s31, 0x20000")
    A("    s_mov_b32 s34, 896")
    A("    s_mov_b32 s35, 0x20000")
    A("    s_mul_i32 s3, s41, 28")
    A("    v_lshl_add_u32 v8, v0, 1, s3")
    A("    s_lshl_b32 s14, s41, 7")
    A("    s_add_u32 s14, s14, 0x80000")
    A(f"    s_mul_i32 s3, s41, {TAB}")
    A("    s_lshr_b32 s15, s38, 2")
    A(f"    s_mul_i32 s15, s15, {PS}")
    A("    s_and_b32 s16, s38, 3")
    A("    s_lshl_b32 s16, s16, 4")
    A("    s_add_u32 s15, s15, s16")
    A("    s_add_u32 s3, s3, 0x400000")
    A(f"    s_mul_i32 s24, s41, {GB}")
    A("    s_waitcnt lgkmcnt(0)")
    A("    s_barrier")
    A("    s_load_dwordx2 s[20:21], s[12:13], s14 ; epoch")
    for x, y in [(28, 6), (29, 7), (32, 8), (33, 9)]: A(f"    s_mov_b32 s{x}, s{y}")
    for k in range(K):
        A(f"    buffer_load_ushort v{20+2*k}, v8, s[28:31], 0 offen offset:{k*GPC*28}")
        A(f"    buffer_load_ushort v{21+2*k}, v8, s[32:35], 0 offen offset:{k*GPC*28}")
    A("    v_lshlrev_b32 v1, 3, v0                ; lane*8")
    A("    s_add_u32 s26, s12, s3")
    A("    s_addc_u32 s27, s13, 0")
    A("    s_mov_b32 s16, s4")
    A("    s_mov_b32 s17, s5")
    A(f"    s_mov_b32 s18, {32*GB}")
    A("    s_mov_b32 s19, 0x20000")
    if TLBW:
        A("    v_lshrrev_b32 v30, 1, v0")
        A(f"    s_mov_b32 s3, {GPC*GB}")
        A("    v_mul_lo_u32 v30, v30, s3")
        A("    v_and_b32 v31, 1, v0")
        A(f"    v_mul_u32_u24 v31, {GB-128}, v31")
        A("    v_add3_u32 v30, v30, v31, s24")
        A(f"    s_mov_b64 exec, {hex((1<<(2*K))-1)}")
        A("    buffer_load_dword v31, v30, s[16:19], 0 offen nt")
        A("    s_mov_b32 s28, s10")
        A("    s_mov_b32 s29, s11")
        A(f"    s_mov_b32 s30, {32*GB}")
        A("    buffer_load_dword v29, v30, s[28:31], 0 offen nt")
        A("    s_mov_b64 exec, -1")
    if RBK:
        A(f"    s_mov_b32 s3, {hex(f2u(float((Tc + (1 if RBPAR == 0 else -1)) * 512)))}")
        A("    s_bitcmp1_b32 s38, 0")
        A(f"    s_cselect_b32 s3, {hex(f2u(float((Tc + (1 if RBPAR == 1 else -1)) * 512)))}, s3")
        A("    v_mov_b32 v28, s3")
    A("    v_mov_b32 v5, 1")
    A("    s_mov_b32 s33, 0")
    if STAMP: A("    s_mov_b32 s22, s80")
    A("    s_waitcnt lgkmcnt(0)")
    A("    s_mul_i32 s20, s20, 0x9E3779B1")
    A("    s_add_u32 s20, s20, 0x7F4A7C15         ; tag1")
    A("    s_mul_i32 s21, s21, 0x85EBCA6D")
    A("    s_add_u32 s21, s21, 0x2545F491         ; tag2")
    for k in range(K):
        A(f"L_wait{k}:")
        A(f"    ds_read_b32 v6, v4 offset:{CNT+4*k}")
        A(f"    ds_read_b64 v[16:17], v1 offset:{64*k}")
        A("    s_waitcnt lgkmcnt(0)")
        A("    v_readfirstlane_b32 s3, v6")
        A("    s_cmp_eq_u32 s3, 8")
        A(f"    s_cbranch_scc1 L_got{k}")
        A(f"    s_sleep {LSLEEP}")
        A(f"    s_branch L_wait{k}")
        A(f"L_got{k}:")
        if STAMP and DIAG < 0 and k in (0, K-1): A(f"    s_memrealtime s[{4+4*(k>0)}:{5+4*(k>0)}]")
        if STAMP and DIAG == k: A("    s_memrealtime s[4:5]")
        A("    s_mov_b64 exec, 0xff")
        A("    v_mov_b32 v8, v16")
        reduce2(8, None, ("row_shr:1", "row_shr:2", "row_shr:4"))
        A(f"    v_mul_f32 v8, {hex(f2u(0.125))}, v8")
        A("    s_mov_b32 s29, s20")
        A("    v_readlane_b32 s28, v8, 7")
        A("    s_mov_b32 s31, s21")
        A(f"    s_add_u32 s3, s15, {GPC*TAB*k}")
        A("    v_subrev_f32 v6, s28, v16")
        if k in RBK: A("    v_mul_f32 v9, v28, v6")
        else: A(f"    v_mul_f32 v9, {hex(f2u(float(nw)))}, v6")
        A("    v_fma_f32 v14, v9, v6, v17")
        reduce2(14, None, ("row_shr:1", "row_shr:2", "row_shr:4"))
        A(f"    s_add_u32 s23, s15, {GPC*TAB*k+8}")
        A("    v_readlane_b32 s30, v14, 7")
        A("    s_mov_b64 exec, -1")
        A(f"    s_mov_b32 s25, {SPINMAX}")
        A("    s_nop 1")
        if not NOPOLL:
            A("    s_atomic_swap_x2 s[28:29], s[26:27], s3")
            A("    s_atomic_swap_x2 s[30:31], s[26:27], s23")
        for b in range(NB):
            A(f"L_poll{k}_{b}:")
            for j in range(4):
                A(f"    s_load_dwordx16 s[{36+16*j}:{51+16*j}], s[26:27], {hex(GPC*TAB*k+PS*(4*b+j))} glc")
            A("    s_waitcnt lgkmcnt(0)")
            if not NOPOLL:
                A("    s_xor_b32 s3, s37, s20")
                for j in range(16):
                    if j:
                        A(f"    s_xor_b32 s23, s{37+4*j}, s20")
                        A(f"    s_or_b32 s3, s3, s23")
                    A(f"    s_xor_b32 s23, s{39+4*j}, s21")
                    A(f"    s_or_b32 s3, s3, s23")
                A(f"    s_cbranch_scc0 L_ready{k}_{b}")
                if SLEEP: A(f"    s_sleep {SLEEP}")
                A("    s_sub_u32 s25, s25, 1")
                A("    s_cmp_lg_u32 s25, 0")
                A(f"    s_cbranch_scc1 L_poll{k}_{b}")
                A(f"    s_mov_b32 s32, {k*GPC*GB}")
                A(f"    s_getpc_b64 s[34:35]")
                A(f"L_ret{k}_{b}:")
                A(f"    s_add_u32 s34, s34, L_fin{k}-L_ret{k}_{b}")
                A(f"    s_addc_u32 s35, s35, 0")
                A(f"    s_branch L_fallback")
            A(f"L_ready{k}_{b}:")
            if STAMP and DIAG == k and b == NB - 1:
                A("    s_memrealtime s[6:7]")
                A(f"    s_sub_u32 s101, {SPINMAX}, s25")
            if b == 0:
                A("    v_mov_b32 v9, s36                      ; reference")
                A("    v_mov_b32 v10, 0")
                A("    v_mov_b32 v11, 0")
                A("    v_mov_b32 v12, 0")
                A("    v_mov_b32 v13, 0")
                A("    v_mov_b32 v14, s38")
                A("    v_mov_b32 v15, 0")
            for j in range(16):
                if b == 0 and j == 0: continue
                p = j & 1
                A(f"    v_sub_f32 v{16+p}, s{36+4*j}, v9")
                A(f"    v_add_f32 v{14+p}, s{38+4*j}, v{14+p}")
                A(f"    v_add_f32 v{10+p}, v{16+p}, v{10+p}")
                A(f"    v_fma_f32 v{12+p}, v{16+p}, v{16+p}, v{12+p}")
        A("    s_mov_b32 s33, 1")
        if k in RBK:
            we = (Tc + (1 if RBPAR == 0 else -1)) / Tc; wo = (Tc + (1 if RBPAR == 1 else -1)) / Tc
            A(f"    v_mul_f32 v10, {hex(f2u(we))}, v10")
            A(f"    v_mul_f32 v11, {hex(f2u(wo))}, v11")
            A(f"    v_mul_f32 v12, {hex(f2u(we))}, v12")
            A(f"    v_mul_f32 v13, {hex(f2u(wo))}, v13")
        A("    v_add_f32 v10, v10, v11")
        A("    v_add_f32 v12, v12, v13")
        A("    v_add_f32 v14, v14, v15")
        A(f"    v_mul_f32 v10, {hex(f2u(1.0/MEM))}, v10")
        A(f"    v_mul_f32 v12, {hex(f2u(1.0/MEM))}, v12")
        A(f"    v_mul_f32 v8, {hex(f2u(1.0/N))}, v14")
        A("    v_fma_f32 v12, -v10, v10, v12")
        A("    v_add_f32 v9, v9, v10")
        A("    v_add_f32 v8, v8, v12                  ; var")
        A(f"L_fin{k}:")
        if STAMP and DIAG < 0 and k in (0, K-1): A(f"    s_memrealtime s[{6+4*(k>0)}:{7+4*(k>0)}]")
        if STAMP and DIAG == k: A("    s_memrealtime s[8:9]")
        A("    v_max_f32 v8, 0, v8")
        A("    v_cvt_pk_bf16_f32 v12, v9, v9")
        A("    v_lshlrev_b32 v12, 16, v12")
        A("    v_sub_f32 v13, v9, v12")
        A("    v_fma_f32 v8, v13, v13, v8             ; E[(x-mu_b)^2]")
        A("    v_cvt_pk_bf16_f32 v8, v8, v8")
        A("    v_lshlrev_b32 v8, 16, v8")
        A(f"    v_add_f32 v8, {hex(f2u(1e-5))}, v8")
        A("    v_cvt_pk_bf16_f32 v8, v8, v8")
        A("    v_lshlrev_b32 v8, 16, v8")
        A("    v_sqrt_f32 v8, v8")
        A("    s_waitcnt vmcnt(0)")
        A("    v_cvt_pk_bf16_f32 v8, v8, v8")
        A("    v_lshlrev_b32 v8, 16, v8")
        A("    v_rcp_f32 v8, v8")
        A(f"    v_lshlrev_b32 v6, 16, v{20+2*k}")
        A(f"    v_lshlrev_b32 v7, 16, v{21+2*k}")
        A("    v_mul_f32 v6, v8, v6                   ; scale_c")
        A("    v_fma_f32 v7, -v12, v6, v7             ; shift_c")
        A("    s_mov_b64 exec, 0xffff")
        A(f"    ds_write_b64 v1, v[6:7] offset:{SC+128*k}")
        A(f"    ds_write_b32 v4, v5 offset:{FLG+4*k}")
        if STAMP and DIAG == k: A("    s_memrealtime s[10:11]")
        A("    s_mov_b64 exec, -1")
    A("    s_cmp_eq_u32 s33, 0")
    A("    s_cbranch_scc1 L_svc_done")
    A("    s_mov_b32 s16, s12")
    A("    s_mov_b32 s17, s13")
    A("    s_mov_b32 s18, 0x100000")
    A("    v_mov_b32 v6, s20")
    A("    v_mov_b32 v7, s21")
    A("    v_mov_b32 v8, s14")
    A("    s_mov_b64 exec, 1")
    if not NOPOLL: A("    buffer_store_dwordx2 v[6:7], v8, s[16:19], 0 offen sc1")
    A("L_svc_done:")
    if STAMP:
        A("    s_waitcnt lgkmcnt(0)")
        A("    s_mov_b32 s80, s22")
        A("    s_mov_b32 s82, s4")
        A("    s_mov_b32 s84, s6")
        A("    s_mov_b32 s86, s8")
        A("    s_mov_b32 s88, s10")
        A("    s_mov_b32 s36, 8")
        A("    s_branch L_stamp")
    else:
        A("    s_endpgm")
    if not NOPOLL:
        A("L_fallback:")
        A("    s_add_u32 s32, s32, s24")
        A("    v_lshl_add_u32 v30, v0, 4, s32")
        A("    s_mov_b32 s23, 0xffff0000")
        A("    buffer_load_dword v31, v30, s[16:19], 0 offen")
        for z in range(8, 16): A(f"    v_mov_b32 v{z}, 0")
        A("    s_mov_b32 s3, 0")
        A("    s_waitcnt vmcnt(0)")
        A("    v_readfirstlane_b32 s28, v31")
        A("    s_lshl_b32 s28, s28, 16                ; pivot")
        A("L_fb_loop:")
        for j in range(4):
            A(f"    buffer_load_dwordx4 v[{32+4*j}:{35+4*j}], v30, s[16:19], s3 offen offset:{1024*j}")
        A("    s_waitcnt vmcnt(0)")
        for q in range(16):
            A(f"    v_lshlrev_b32 v{48+2*q}, 16, v{32+q}")
            A(f"    v_and_b32 v{49+2*q}, s23, v{32+q}")
        for q in range(16):
            A(f"    v_pk_add_f32 v[{48+2*q}:{49+2*q}], v[{48+2*q}:{49+2*q}], s[28:29] op_sel_hi:[1,0] neg_lo:[0,1] neg_hi:[0,1]")
        for q in range(16):
            a1 = 8 + 2 * (q & 1); a2 = 12 + 2 * (q & 1)
            A(f"    v_pk_add_f32 v[{a1}:{a1+1}], v[{a1}:{a1+1}], v[{48+2*q}:{49+2*q}]")
            A(f"    v_pk_fma_f32 v[{a2}:{a2+1}], v[{48+2*q}:{49+2*q}], v[{48+2*q}:{49+2*q}], v[{a2}:{a2+1}]")
        A("    s_add_u32 s3, s3, 4096")
        A(f"    s_cmp_lt_u32 s3, {GB}")
        A("    s_cbranch_scc1 L_fb_loop")
        A("    v_pk_add_f32 v[8:9], v[8:9], v[10:11]")
        A("    v_pk_add_f32 v[12:13], v[12:13], v[14:15]")
        A("    s_nop 0")
        A("    v_add_f32 v8, v8, v9")
        A("    v_add_f32 v12, v12, v13")
        reduce2(8, 12)
        A("    s_nop 0")
        A("    v_readlane_b32 s29, v8, 63")
        A("    v_readlane_b32 s30, v12, 63")
        A(f"    v_mov_b32 v10, {hex(f2u(1.0/N))}")
        A("    s_nop 0")
        A("    v_mul_f32 v11, s29, v10")
        A("    v_mul_f32 v8, s30, v10")
        A("    v_fma_f32 v8, -v11, v11, v8            ; var")
        A("    v_add_f32 v9, s28, v11                 ; mean")
        A("    s_setpc_b64 s[34:35]")
    if STAMP:
        A("L_stamp:")
        A("    s_mov_b64 exec, -1")
        A("    s_waitcnt vmcnt(0)")
        A("    s_memrealtime s[90:91]")
        A("    s_getreg_b32 s92, hwreg(HW_REG_HW_ID)" if DIAG < 0 else "    s_mov_b32 s92, s101")
        A("    s_getreg_b32 s93, hwreg(HW_REG_XCC_ID)")
        A("    s_mov_b32 s24, s12")
        A("    s_mov_b32 s25, s13")
        A("    s_mov_b32 s26, 0x1000000")
        A("    s_mov_b32 s27, 0x20000")
        A("    s_mul_i32 s3, s2, 9")
        A("    s_add_u32 s3, s3, s36")
        A("    s_lshl_b32 s3, s3, 6")
        A("    s_add_u32 s3, s3, 0x90000")
        A("    v_mov_b32 v8, s3")
        A("    s_waitcnt lgkmcnt(0)")
        for k, sr in enumerate([80, 82, 84, 86, 88, 90, 92, 93]): A(f"    v_mov_b32 v{12+k}, s{sr}")
        A("    s_mov_b64 exec, 1")
        A("    buffer_store_dwordx4 v[12:15], v8, s[24:27], 0 offen")
        A("    buffer_store_dwordx4 v[16:19], v8, s[24:27], 0 offen offset:16")
    A("L_end:")
    A("    s_endpgm")
    A('.section .rodata,"a"'); A(".p2align 6")
    A(f".amdhsa_kernel {name}_kernel")
    A(f"  .amdhsa_next_free_vgpr {nvgpr}")
    A(f"  .amdhsa_next_free_sgpr 102")
    A(f"  .amdhsa_accum_offset {(nvgpr+3)//4*4}")
    A("  .amdhsa_group_segment_fixed_size 0")
    A("  .amdhsa_kernarg_size 48")
    A("  .amdhsa_user_sgpr_count 2")
    A("  .amdhsa_user_sgpr_kernarg_segment_ptr 1")
    A("  .amdhsa_system_sgpr_workgroup_id_x 1")
    A("  .amdhsa_float_denorm_mode_32 3")
    A(".end_amdhsa_kernel")
    return "\n".join(L) + "\n"

if __name__ == "__main__":
    kw = {}; out = None
    for a in sys.argv[1:]:
        k, v = a.split("=", 1)
        if k == "out": out = v; continue
        if k not in ("SCHED", "CLS", "RBK"):
            try: v = int(v)
            except ValueError: pass
        kw[k] = v
    s = gen(**kw)
    if out: open(out, "w").write(s)
    else: sys.stdout.write(s)
```

```python
import sys, struct
def f2u(f): return struct.unpack('<I', struct.pack('<f', f))[0]

def gen(K=4, W=4, X0=14, R=1, LDNT="nt", STNT="sc0 sc1", STAMP=0, SLEEP=1, LSLEEP=1, FSLEEP=1, SPRIO=3, ALT=1,
        SPINMAX=3000, NOPOLL=0, SW=0, W2=0, W2AT=99, name="standalone__groupnorm__prompt", LASTNT=None, NLAST=0,
        SCHED=None, SLOT=16, DIAG=-1, CLS=None, PS=64, SWN=99, TLBW=0, DMA=0, RBK="", RBC=7, RBPAR=0, PRB=0, LOG=0, NBK=0, CPF=0):
    L = []; A = L.append
    GB = 14 * 131072
    N = 14 * 65536
    MEM = 8 * K
    GPC = 32 // K
    Tc = 28 // K
    T = 28
    CPT = K // 2
    WPC = 8 // CPT
    D0 = 32
    RBK = [int(ch) for ch in str(RBK)]
    VA2 = D0 + 4 * (T + len(RBK))
    nvgpr = VA2 + 3
    VLOG = VA2 + 2
    lgM = MEM.bit_length() - 1
    TAB = (MEM // 4) * PS
    NB = MEM // 16
    BLK = K * TAB + 256
    CNT = 256; FLG = 272; SC = 512
    hdr = open('standalone__groupnorm__prompt.s.ref').read().split('\n')
    for ln in hdr:
        if ln.startswith('; @launch'): break
        A(ln)
    RING = 0
    if DMA: RING = max(W, W2) + 1
    A(f"; @launch grid=(256,1,1) block=(576,1,1) lds={2048 + 8*RING*1024}")
    A('.amdgcn_target "amdgcn-amd-amdhsa--gfx950"')
    A(".text"); A(f".globl {name}_kernel"); A(".p2align 8"); A(f".type {name}_kernel,@function")
    A(f"{name}_kernel:")
    A("    s_cmp_ge_u32 s2, 256")
    A("    s_cbranch_scc1 L_end")
    A("    s_load_dwordx8 s[4:11], s[0:1], 0      ; x, g, b, out")
    A("    s_load_dwordx2 s[12:13], s[0:1], 40    ; ws")
    if STAMP: A("    s_memrealtime s[80:81]")
    A("    v_lshrrev_b32 v1, 6, v0")
    A("    v_and_b32 v0, 63, v0                   ; lane")
    A("    v_readfirstlane_b32 s36, v1")
    A(f"    s_lshr_b32 s41, s2, {lgM}")
    A(f"    s_and_b32 s38, s2, {MEM-1}                 ; member")
    A("    s_cmp_eq_u32 s36, 8")
    A("    s_cbranch_scc1 L_service")
    def reduce2(a, b, steps=("row_shr:1", "row_shr:2", "row_shr:4", "row_shr:8", "B15", "B31")):
        for m in steps:
            if m == "B15": mm = "row_bcast:15 row_mask:0xa bank_mask:0xf"
            elif m == "B31": mm = "row_bcast:31 row_mask:0xc bank_mask:0xf"
            else: mm = m + " row_mask:0xf bank_mask:0xf bound_ctrl:0"
            A("    s_nop 0" if b is not None else "    s_nop 1")
            A(f"    v_add_f32_dpp v{a}, v{a}, v{a} {mm}")
            if b is not None: A(f"    v_add_f32_dpp v{b}, v{b}, v{b} {mm}")
    A("    s_mov_b32 s40, 0xffff0000")
    A(f"    s_mul_i32 s39, s41, {GB}")
    A(f"    s_lshl_b32 s3, s38, {(WPC*1024).bit_length()-1}")
    A("    s_add_u32 s39, s39, s3")
    if CPT == 1:
        A("    s_lshl_b32 s3, s36, 10")
        A("    s_add_u32 s39, s39, s3")
    else:
        A(f"    s_and_b32 s3, s36, {WPC-1}")
        A("    s_lshl_b32 s3, s3, 10")
        A("    s_add_u32 s39, s39, s3")
        A(f"    s_lshr_b32 s37, s36, {WPC.bit_length()-1}")
        A("    s_lshl_b32 s3, s37, 17")
        A("    s_add_u32 s39, s39, s3")
    A("    v_lshl_add_u32 v1, v0, 4, s39")
    A(f"    s_mov_b32 s18, {32*GB}")
    A("    s_mov_b32 s19, 0x20000")
    A(f"    s_mov_b32 s22, {32*GB}")
    A("    s_mov_b32 s23, 0x20000")
    A(f"    v_xor_b32 v{VA2}, 0x2000, v1")
    if DMA:
        A(f"    s_mul_i32 s42, s36, {RING*1024}")
        A(f"    s_add_u32 s42, s42, 2048")
        A(f"    v_lshl_add_u32 v{VA2+1}, v0, 4, s42")
    nw = Tc * 512
    if CLS is None: classes = [(W, W, X0, W2, W2AT)]
    else: classes = [tuple(int(y) for y in x.split('.')) for x in str(CLS).split('_')]
    ncl = len(classes)
    if RBK:
        assert K == 2 and ncl == 1
        classes = classes * 2
        A("    s_bitcmp1_b32 s38, 0")
        A("    s_cbranch_scc1 L_class1")
    for cl in range(1, ncl):
        A(f"    s_and_b32 s3, s41, {ncl-1}")
        A(f"    s_cmp_eq_u32 s3, {cl}")
        A(f"    s_cbranch_scc1 L_class{cl}")
    def data_path(cl, W0, W, X0, W2, W2AT):
        pend = []
        tiles = []
        for k in range(K):
            for j in range(Tc):
                if k in RBK and j == RBC:
                    if cl == RBPAR: tiles += [(k, j, 0), (k, j, 1)]
                else:
                    tiles.append((k, j, (j & 1) if ALT else 0))
        T = len(tiles)
        X0 = X0 + T - 28
        first = [i for i in range(T) if i == 0 or tiles[i][0] != tiles[i-1][0]]
        last = [i for i in range(T) if i == T - 1 or tiles[i][0] != tiles[i+1][0]]
        def wait_for(op):
            if op not in pend: return
            idx = pend.index(op); n = len(pend) - 1 - idx
            A(f"    s_waitcnt vmcnt({n})")
            del pend[:idx + 1]
        logq = []
        def log(idx):
            if not LOG: return
            if logq:
                A("    s_waitcnt lgkmcnt(0)")
                A(f"    v_writelane_b32 v{VLOG}, s70, {logq.pop()}")
            if idx is not None:
                A("    s_memrealtime s[70:71]")
                logq.append(idx)
        def va(i): return f"v{VA2}" if tiles[i][2] else "v1"
        def so(i):
            o = tiles[i][0] * GPC * GB + tiles[i][1] * CPT * 131072
            if o == 0: return "0"
            A(f"    s_mov_b32 s3, {o}")
            return "s3"
        def ld(i):
            r = D0 + 4 * i
            if DMA:
                A(f"    s_add_u32 m0, s42, {(i % RING) * 1024}")
                o = so(i)
                if o == "0": A("    s_nop 0")
                A(f"    buffer_load_dwordx4 {va(i)}, s[16:19], {o} offen {LDNT} lds"); pend.append(('L', i))
                return
            o = so(i)
            A(f"    buffer_load_dwordx4 v[{r}:{r+3}], {va(i)}, s[16:19], {o} offen {LDNT}".rstrip()); pend.append(('L', i))
        def stats(i):
            r = D0 + 4 * i
            fst = i in first
            if fst:
                A(f"    v_readfirstlane_b32 s46, v{r}")
            for q in range(4):
                A(f"    v_lshlrev_b32 v{16+2*q}, 16, v{r+q}")
                A(f"    v_and_b32 v{17+2*q}, s40, v{r+q}")
                if fst and q == 0: A(f"    s_lshl_b32 s46, s46, 16                ; pivot")
            for q in range(4):
                d = (8 + 2 * q) if (fst and q < 2) else (16 + 2 * q)
                A(f"    v_pk_add_f32 v[{d}:{d+1}], v[{16+2*q}:{17+2*q}], s[46:47] op_sel_hi:[1,0] neg_lo:[0,1] neg_hi:[0,1]")
            for q in range(4):
                a1 = 8 + 2 * (q & 1); a2 = 12 + 2 * (q & 1)
                if fst and q < 2:
                    A(f"    v_pk_mul_f32 v[{a2}:{a2+1}], v[{a1}:{a1+1}], v[{a1}:{a1+1}]")
                else:
                    A(f"    v_pk_add_f32 v[{a1}:{a1+1}], v[{a1}:{a1+1}], v[{16+2*q}:{17+2*q}]")
                    A(f"    v_pk_fma_f32 v[{a2}:{a2+1}], v[{16+2*q}:{17+2*q}], v[{16+2*q}:{17+2*q}], v[{a2}:{a2+1}]")
        def post(k):
            nw = 512 * (last[k] - first[k] + 1)
            A("    v_pk_add_f32 v[8:9], v[8:9], v[10:11]")
            A("    v_pk_add_f32 v[12:13], v[12:13], v[14:15]")
            A("    s_nop 0")
            A("    v_add_f32 v8, v8, v9")
            A("    v_add_f32 v12, v12, v13")
            reduce2(8, 12)
            A(f"    v_mul_f32 v9, {hex(f2u(1.0/nw))}, v8")
            A("    s_mov_b32 exec_lo, 0")
            A("    s_mov_b32 exec_hi, 0x80000000")
            A(f"    v_fma_f32 v11, -v9, v8, v12            ; M2")
            A(f"    v_add_f32 v10, s46, v9                 ; mean")
            A(f"    ds_write_b64 v4, v[10:11] offset:{k*64}")
            A(f"    ds_add_u32 v5, v6 offset:{CNT+4*k}")
            A("    s_mov_b64 exec, -1")
        def get_scale(k):
            A(f"L_flag{k}_{cl}:")
            A(f"    ds_read_b32 v7, v5 offset:{FLG+4*k}")
            A(f"    ds_read_b64 v[2:3], v0 offset:{SC+128*k}")
            A("    s_waitcnt lgkmcnt(0)")
            A("    v_readfirstlane_b32 s3, v7")
            A("    s_cmp_lg_u32 s3, 0")
            A(f"    s_cbranch_scc1 L_flagok{k}_{cl}")
            A(f"    s_sleep {FSLEEP}")
            A(f"    s_branch L_flag{k}_{cl}")
            A(f"L_flagok{k}_{cl}:")
            if STAMP and k == 0: A("    s_memrealtime s[86:87]")
            if STAMP and k == K - 1: A("    s_memrealtime s[88:89]")
        def tail_end():
            if STAMP: A("    s_branch L_stamp")
            else: A("    s_endpgm")
        def norm_store(i, wait=True):
            if i in first and wait: get_scale(tiles[i][0])
            c = tiles[i][1] * CPT
            r = D0 + 4 * i
            t = 16 + 8 * (i & 1)
            sp = 48 + 2 * (i & 1)
            A(f"    v_readlane_b32 s{sp}, v2, {c}")
            A(f"    v_readlane_b32 s{sp+1}, v3, {c}")
            for q in range(4):
                A(f"    v_lshlrev_b32 v{t+2*q}, 16, v{r+q}")
                A(f"    v_and_b32 v{t+1+2*q}, s40, v{r+q}")
            for q in range(4):
                A(f"    v_pk_fma_f32 v[{t+2*q}:{t+1+2*q}], v[{t+2*q}:{t+1+2*q}], s[{sp}:{sp+1}], s[{sp}:{sp+1}] op_sel:[0,0,1] op_sel_hi:[1,0,1]")
            for q in range(4):
                A(f"    v_cvt_pk_bf16_f32 v{r+q}, v{t+2*q}, v{t+1+2*q}")
            o = so(i)
            st = [p for p in pend if p[0] == 'S']
            if SW and i < SWN and len(st) >= SW: wait_for(st[len(st)-SW])
            pol = LASTNT if (LASTNT is not None and i >= T - NLAST) else STNT
            A(f"    buffer_store_dwordx4 v[{r}:{r+3}], {va(i)}, s[20:23], {o} offen {pol}".rstrip()); pend.append(('S', i))
            log(32 + i)
        if PRB:
            A("    s_lshr_b32 s50, s36, 2")
            A(f"    s_mul_i32 s50, s50, {GPC}")
            A("    s_add_u32 s50, s50, s41")
            A(f"    s_mul_i32 s50, s50, {GB}")
            A(f"    s_add_u32 s50, s50, {7*131072}")
            A("    s_bfe_u32 s51, s36, 0x10001")
            A("    s_lshl_b32 s51, s51, 13")
            A("    s_add_u32 s50, s50, s51")
            A("    s_lshl_b32 s51, s38, 8")
            A("    s_add_u32 s50, s50, s51")
            A("    s_bitcmp1_b32 s36, 0")
        A("    s_waitcnt lgkmcnt(0)")
        if PRB:
            A("    s_cselect_b32 s52, s10, s4")
            A("    s_cselect_b32 s53, s11, s5")
            A("    s_add_u32 s52, s52, s50")
            A("    s_addc_u32 s53, s53, 0")
            for rr in range(PRB):
                A("    s_memtime s[54:55]")
                A(f"    s_load_dword s58, s[52:53], {hex(rr*0x4000)}")
                A("    s_waitcnt lgkmcnt(0)")
                A("    s_memtime s[56:57]")
                A("    s_waitcnt lgkmcnt(0)")
                A(f"    s_sub_u32 s{60+rr}, s56, s54")
        A("    s_mov_b32 s16, s4")
        A("    s_mov_b32 s17, s5")
        nxt = 0
        for i in range(W0): ld(i); nxt += 1
        A("    s_mov_b32 s20, s10")
        A("    s_mov_b32 s21, s11")
        if CPT > 1: A("    v_add_u32 v0, s37, v0")
        A("    s_lshl_b32 s3, s36, 3")
        A("    v_mov_b32 v4, s3")
        A("    v_mov_b32 v5, 0")
        A("    v_mov_b32 v6, 1")
        A("    v_lshlrev_b32 v0, 3, v0")
        A("    s_barrier")
        done = 0
        if SCHED is not None: sched = [0] * (T - len(str(SCHED))) + [int(ch) for ch in str(SCHED)]
        else: sched = [R if i >= X0 else 0 for i in range(T)]
        def step(i, nxt):
            wait_for(('L', i))
            log(i)
            if STAMP and i == 0: A("    s_memrealtime s[82:83]")
            if DMA: A(f"    ds_read_b128 v[{D0+4*i}:{D0+4*i+3}], v{VA2+1} offset:{(i % RING) * 1024}")
            win = min(W2, W + 2 * (i - W2AT + 1)) if (W2 and i >= W2AT) else min(W, W0 + i)
            while nxt < T and nxt <= i + win: ld(nxt); nxt += 1
            if NBK and chk[0] and X0 <= i < T - 1:
                A(f"    ds_read_b32 v7, v5 offset:{FLG}")
                A(f"    ds_read_b64 v[2:3], v0 offset:{SC}")
            if DMA: A("    s_waitcnt lgkmcnt(0)")
            stats(i)
            if i in last: post(tiles[i][0])
            return nxt
        chk = [True]
        if not NBK:
            for i in range(T):
                nxt = step(i, nxt)
                for _ in range(sched[i]):
                    if last[tiles[done][0]] <= i:
                        norm_store(done); done += 1
            if STAMP: A("    s_memrealtime s[84:85]")
            while done < T: norm_store(done); done += 1
        else:
            assert SW == 0 and not LOG
            saved = {}
            for i in range(T):
                nxt = step(i, nxt)
                if X0 <= i < T - 1:
                    A("    s_waitcnt lgkmcnt(0)")
                    A("    v_readfirstlane_b32 s3, v7")
                    A("    s_cmp_lg_u32 s3, 0")
                    A(f"    s_cbranch_scc1 L_early{i}_{cl}")
                    saved[i] = (list(pend), nxt)
            if STAMP: A("    s_memrealtime s[84:85]")
            for j in range(T):
                A(f"L_st{j}_{cl}:")
                norm_store(j)
            tail_end()
            chk[0] = False
            for i0, (pd, nx) in saved.items():
                A(f"L_early{i0}_{cl}:")
                if STAMP: A("    s_memrealtime s[86:87]")
                pend[:] = pd; nxt = nx; done = 0
                norm_store(0, False); done = 1
                for i in range(i0 + 1, T):
                    nxt = step(i, nxt)
                    norm_store(done); done += 1
                if STAMP: A("    s_memrealtime s[84:85]")
                A(f"    s_branch L_st{done}_{cl}")
            return
        if LOG:
            log(None)
            A("    s_mul_i32 s3, s2, 8")
            A("    s_add_u32 s3, s3, s36")
            A("    s_lshl_b32 s3, s3, 8")
            A("    s_add_u32 s3, s3, 0x200000")
            A("    v_lshrrev_b32 v2, 1, v0")
            A("    v_add_u32 v2, s3, v2")
            A("    s_mov_b32 s24, s12")
            A("    s_mov_b32 s25, s13")
            A("    s_mov_b32 s26, 0x1000000")
            A("    s_mov_b32 s27, 0x20000")
            A(f"    buffer_store_dword v{VLOG}, v2, s[24:27], 0 offen")
        if PRB:
            A("    s_waitcnt lgkmcnt(0)")
            A("    s_lshl_b32 s61, s61, 16")
            A("    s_and_b32 s60, s60, 0xffff")
            A("    s_or_b32 s86, s60, s61")
        if STAMP: A("    s_branch L_stamp")
        else: A("    s_endpgm")
    for cl, pr in enumerate(classes):
        if cl: A(f"L_class{cl}:")
        data_path(cl, *pr)
    A("L_service:")
    if SPRIO: A(f"    s_setprio {SPRIO}")
    A("    v_mov_b32 v4, 0")
    A("    v_mov_b32 v5, 0")
    A("    v_mov_b32 v6, 0")
    A("    v_mov_b32 v7, 0")
    A(f"    ds_write_b128 v4, v[4:7] offset:{CNT}")
    A(f"    ds_write_b128 v4, v[4:7] offset:{FLG}")
    A("    s_mov_b32 s30, 896")
    A("    s_mov_b32 s31, 0x20000")
    A("    s_mov_b32 s34, 896")
    A("    s_mov_b32 s35, 0x20000")
    A("    s_mul_i32 s3, s41, 28")
    A("    v_lshl_add_u32 v8, v0, 1, s3")
    A(f"    s_mul_i32 s3, s41, {BLK}")
    A(f"    s_add_u32 s14, s3, {K*TAB}")
    A("    s_lshr_b32 s15, s38, 2")
    A(f"    s_mul_i32 s15, s15, {PS}")
    A("    s_and_b32 s16, s38, 3")
    A("    s_lshl_b32 s16, s16, 4")
    A("    s_add_u32 s15, s15, s16")
    A(f"    s_mul_i32 s24, s41, {GB}")
    A("    s_waitcnt lgkmcnt(0)")
    A("    s_barrier")
    if CPF:
        A("    s_getpc_b64 s[60:61]")
        A("L_pc:")
        A(f"    s_sub_u32 s60, s60, L_pc-{name}_kernel")
        A("    s_subb_u32 s61, s61, 0")
        A("    s_lshr_b32 s59, s2, 3")
        A(f"    s_mul_i32 s59, s59, {CPF*64}")
        A("    s_add_u32 s60, s60, s59")
        A("    s_addc_u32 s61, s61, 0")
        for j in range(CPF):
            A(f"    s_load_dword s{44+j}, s[60:61], {hex(64*j)}")
    A("    s_load_dwordx2 s[20:21], s[12:13], s14 glc ; epoch")
    for x, y in [(28, 6), (29, 7), (32, 8), (33, 9)]: A(f"    s_mov_b32 s{x}, s{y}")
    for k in range(K):
        A(f"    buffer_load_ushort v{20+2*k}, v8, s[28:31], 0 offen offset:{k*GPC*28}")
        A(f"    buffer_load_ushort v{21+2*k}, v8, s[32:35], 0 offen offset:{k*GPC*28}")
    A("    v_lshlrev_b32 v1, 3, v0                ; lane*8")
    A("    s_add_u32 s26, s12, s3")
    A("    s_addc_u32 s27, s13, 0")
    A("    s_mov_b32 s16, s4")
    A("    s_mov_b32 s17, s5")
    A(f"    s_mov_b32 s18, {32*GB}")
    A("    s_mov_b32 s19, 0x20000")
    if TLBW:
        A("    v_lshrrev_b32 v30, 1, v0")
        A(f"    s_mov_b32 s3, {GPC*GB}")
        A("    v_mul_lo_u32 v30, v30, s3")
        A("    v_and_b32 v31, 1, v0")
        A(f"    v_mul_u32_u24 v31, {GB-128}, v31")
        A("    v_add3_u32 v30, v30, v31, s24")
        A(f"    s_mov_b64 exec, {hex((1<<(2*K))-1)}")
        A("    buffer_load_dword v31, v30, s[16:19], 0 offen nt")
        A("    s_mov_b32 s28, s10")
        A("    s_mov_b32 s29, s11")
        A(f"    s_mov_b32 s30, {32*GB}")
        A("    buffer_load_dword v29, v30, s[28:31], 0 offen nt")
        A("    s_mov_b64 exec, -1")
    if RBK:
        A(f"    s_mov_b32 s3, {hex(f2u(float((Tc + (1 if RBPAR == 0 else -1)) * 512)))}")
        A("    s_bitcmp1_b32 s38, 0")
        A(f"    s_cselect_b32 s3, {hex(f2u(float((Tc + (1 if RBPAR == 1 else -1)) * 512)))}, s3")
        A("    v_mov_b32 v28, s3")
    A("    v_mov_b32 v5, 1")
    A("    s_mov_b32 s33, 0")
    if STAMP: A("    s_mov_b32 s22, s80")
    A("    s_waitcnt lgkmcnt(0)")
    A("    s_mul_i32 s20, s20, 0x9E3779B1")
    A("    s_add_u32 s20, s20, 0x7F4A7C15         ; tag1")
    A("    s_mul_i32 s21, s21, 0x85EBCA6D")
    A("    s_add_u32 s21, s21, 0x2545F491         ; tag2")
    for k in range(K):
        A(f"L_wait{k}:")
        A(f"    ds_read_b32 v6, v4 offset:{CNT+4*k}")
        A(f"    ds_read_b64 v[16:17], v1 offset:{64*k}")
        A("    s_waitcnt lgkmcnt(0)")
        A("    v_readfirstlane_b32 s3, v6")
        A("    s_cmp_eq_u32 s3, 8")
        A(f"    s_cbranch_scc1 L_got{k}")
        A(f"    s_sleep {LSLEEP}")
        A(f"    s_branch L_wait{k}")
        A(f"L_got{k}:")
        if STAMP and DIAG < 0 and k in (0, K-1): A(f"    s_memrealtime s[{4+4*(k>0)}:{5+4*(k>0)}]")
        if STAMP and DIAG == k: A("    s_memrealtime s[4:5]")
        A("    s_mov_b64 exec, 0xff")
        A("    v_mov_b32 v8, v16")
        reduce2(8, None, ("row_shr:1", "row_shr:2", "row_shr:4"))
        A(f"    v_mul_f32 v8, {hex(f2u(0.125))}, v8")
        A("    s_mov_b32 s29, s20")
        A("    v_readlane_b32 s28, v8, 7")
        A("    s_mov_b32 s31, s21")
        A(f"    s_add_u32 s3, s15, {TAB*k}")
        A("    v_subrev_f32 v6, s28, v16")
        if k in RBK: A("    v_mul_f32 v9, v28, v6")
        else: A(f"    v_mul_f32 v9, {hex(f2u(float(nw)))}, v6")
        A("    v_fma_f32 v14, v9, v6, v17")
        reduce2(14, None, ("row_shr:1", "row_shr:2", "row_shr:4"))
        A(f"    s_add_u32 s23, s15, {TAB*k+8}")
        A("    v_readlane_b32 s30, v14, 7")
        A("    s_mov_b64 exec, -1")
        A(f"    s_mov_b32 s25, {SPINMAX}")
        A("    s_nop 1")
        if not NOPOLL:
            A("    s_atomic_swap_x2 s[28:29], s[26:27], s3")
            A("    s_atomic_swap_x2 s[30:31], s[26:27], s23")
        for b in range(NB):
            A(f"L_poll{k}_{b}:")
            for j in range(4):
                A(f"    s_load_dwordx16 s[{36+16*j}:{51+16*j}], s[26:27], {hex(TAB*k+PS*(4*b+j))} glc")
            A("    s_waitcnt lgkmcnt(0)")
            if not NOPOLL:
                A("    s_xor_b32 s3, s37, s20")
                for j in range(16):
                    if j:
                        A(f"    s_xor_b32 s23, s{37+4*j}, s20")
                        A(f"    s_or_b32 s3, s3, s23")
                    A(f"    s_xor_b32 s23, s{39+4*j}, s21")
                    A(f"    s_or_b32 s3, s3, s23")
                A(f"    s_cbranch_scc0 L_ready{k}_{b}")
                if SLEEP: A(f"    s_sleep {SLEEP}")
                A("    s_sub_u32 s25, s25, 1")
                A("    s_cmp_lg_u32 s25, 0")
                A(f"    s_cbranch_scc1 L_poll{k}_{b}")
                A(f"    s_mov_b32 s32, {k*GPC*GB}")
                A(f"    s_getpc_b64 s[34:35]")
                A(f"L_ret{k}_{b}:")
                A(f"    s_add_u32 s34, s34, L_fin{k}-L_ret{k}_{b}")
                A(f"    s_addc_u32 s35, s35, 0")
                A(f"    s_branch L_fallback")
            A(f"L_ready{k}_{b}:")
            if STAMP and DIAG == k and b == NB - 1:
                A("    s_memrealtime s[6:7]")
                A(f"    s_sub_u32 s101, {SPINMAX}, s25")
            if b == 0:
                A("    v_mov_b32 v9, s36                      ; reference")
                A("    v_mov_b32 v10, 0")
                A("    v_mov_b32 v11, 0")
                A("    v_mov_b32 v12, 0")
                A("    v_mov_b32 v13, 0")
                A("    v_mov_b32 v14, s38")
                A("    v_mov_b32 v15, 0")
            for j in range(16):
                if b == 0 and j == 0: continue
                p = j & 1
                A(f"    v_sub_f32 v{16+p}, s{36+4*j}, v9")
                A(f"    v_add_f32 v{14+p}, s{38+4*j}, v{14+p}")
                A(f"    v_add_f32 v{10+p}, v{16+p}, v{10+p}")
                A(f"    v_fma_f32 v{12+p}, v{16+p}, v{16+p}, v{12+p}")
        A("    s_mov_b32 s33, 1")
        if k in RBK:
            we = (Tc + (1 if RBPAR == 0 else -1)) / Tc; wo = (Tc + (1 if RBPAR == 1 else -1)) / Tc
            A(f"    v_mul_f32 v10, {hex(f2u(we))}, v10")
            A(f"    v_mul_f32 v11, {hex(f2u(wo))}, v11")
            A(f"    v_mul_f32 v12, {hex(f2u(we))}, v12")
            A(f"    v_mul_f32 v13, {hex(f2u(wo))}, v13")
        A("    v_add_f32 v10, v10, v11")
        A("    v_add_f32 v12, v12, v13")
        A("    v_add_f32 v14, v14, v15")
        A(f"    v_mul_f32 v10, {hex(f2u(1.0/MEM))}, v10")
        A(f"    v_mul_f32 v12, {hex(f2u(1.0/MEM))}, v12")
        A(f"    v_mul_f32 v8, {hex(f2u(1.0/N))}, v14")
        A("    v_fma_f32 v12, -v10, v10, v12")
        A("    v_add_f32 v9, v9, v10")
        A("    v_add_f32 v8, v8, v12                  ; var")
        A(f"L_fin{k}:")
        if STAMP and DIAG < 0 and k in (0, K-1): A(f"    s_memrealtime s[{6+4*(k>0)}:{7+4*(k>0)}]")
        if STAMP and DIAG == k: A("    s_memrealtime s[8:9]")
        A("    v_max_f32 v8, 0, v8")
        A("    v_cvt_pk_bf16_f32 v12, v9, v9")
        A("    v_lshlrev_b32 v12, 16, v12")
        A("    v_sub_f32 v13, v9, v12")
        A("    v_fma_f32 v8, v13, v13, v8             ; E[(x-mu_b)^2]")
        A("    v_cvt_pk_bf16_f32 v8, v8, v8")
        A("    v_lshlrev_b32 v8, 16, v8")
        A(f"    v_add_f32 v8, {hex(f2u(1e-5))}, v8")
        A("    v_cvt_pk_bf16_f32 v8, v8, v8")
        A("    v_lshlrev_b32 v8, 16, v8")
        A("    v_sqrt_f32 v8, v8")
        A("    s_waitcnt vmcnt(0)")
        A("    v_cvt_pk_bf16_f32 v8, v8, v8")
        A("    v_lshlrev_b32 v8, 16, v8")
        A("    v_rcp_f32 v8, v8")
        A(f"    v_lshlrev_b32 v6, 16, v{20+2*k}")
        A(f"    v_lshlrev_b32 v7, 16, v{21+2*k}")
        A("    v_mul_f32 v6, v8, v6                   ; scale_c")
        A("    v_fma_f32 v7, -v12, v6, v7             ; shift_c")
        A("    s_mov_b64 exec, 0xffff")
        A(f"    ds_write_b64 v1, v[6:7] offset:{SC+128*k}")
        A(f"    ds_write_b32 v4, v5 offset:{FLG+4*k}")
        if STAMP and DIAG == k: A("    s_memrealtime s[10:11]")
        A("    s_mov_b64 exec, -1")
    A("    s_cmp_eq_u32 s33, 0")
    A("    s_cbranch_scc1 L_svc_done")
    A("    s_mov_b32 s16, s12")
    A("    s_mov_b32 s17, s13")
    A("    s_mov_b32 s18, 0x10000")
    A("    v_mov_b32 v6, s20")
    A("    v_mov_b32 v7, s21")
    A("    v_mov_b32 v8, s14")
    A("    s_mov_b64 exec, 1")
    if not NOPOLL: A("    buffer_store_dwordx2 v[6:7], v8, s[16:19], 0 offen sc1")
    A("L_svc_done:")
    if STAMP:
        A("    s_waitcnt lgkmcnt(0)")
        A("    s_mov_b32 s80, s22")
        A("    s_mov_b32 s82, s4")
        A("    s_mov_b32 s84, s6")
        A("    s_mov_b32 s86, s8")
        A("    s_mov_b32 s88, s10")
        A("    s_mov_b32 s36, 8")
        A("    s_branch L_stamp")
    else:
        A("    s_endpgm")
    if not NOPOLL:
        A("L_fallback:")
        A("    s_add_u32 s32, s32, s24")
        A("    v_lshl_add_u32 v30, v0, 4, s32")
        A("    s_mov_b32 s23, 0xffff0000")
        A("    buffer_load_dword v31, v30, s[16:19], 0 offen")
        for z in range(8, 16): A(f"    v_mov_b32 v{z}, 0")
        A("    s_mov_b32 s3, 0")
        A("    s_waitcnt vmcnt(0)")
        A("    v_readfirstlane_b32 s28, v31")
        A("    s_lshl_b32 s28, s28, 16                ; pivot")
        A("L_fb_loop:")
        for j in range(4):
            A(f"    buffer_load_dwordx4 v[{32+4*j}:{35+4*j}], v30, s[16:19], s3 offen offset:{1024*j}")
        A("    s_waitcnt vmcnt(0)")
        for q in range(16):
            A(f"    v_lshlrev_b32 v{48+2*q}, 16, v{32+q}")
            A(f"    v_and_b32 v{49+2*q}, s23, v{32+q}")
        for q in range(16):
            A(f"    v_pk_add_f32 v[{48+2*q}:{49+2*q}], v[{48+2*q}:{49+2*q}], s[28:29] op_sel_hi:[1,0] neg_lo:[0,1] neg_hi:[0,1]")
        for q in range(16):
            a1 = 8 + 2 * (q & 1); a2 = 12 + 2 * (q & 1)
            A(f"    v_pk_add_f32 v[{a1}:{a1+1}], v[{a1}:{a1+1}], v[{48+2*q}:{49+2*q}]")
            A(f"    v_pk_fma_f32 v[{a2}:{a2+1}], v[{48+2*q}:{49+2*q}], v[{48+2*q}:{49+2*q}], v[{a2}:{a2+1}]")
        A("    s_add_u32 s3, s3, 4096")
        A(f"    s_cmp_lt_u32 s3, {GB}")
        A("    s_cbranch_scc1 L_fb_loop")
        A("    v_pk_add_f32 v[8:9], v[8:9], v[10:11]")
        A("    v_pk_add_f32 v[12:13], v[12:13], v[14:15]")
        A("    s_nop 0")
        A("    v_add_f32 v8, v8, v9")
        A("    v_add_f32 v12, v12, v13")
        reduce2(8, 12)
        A("    s_nop 0")
        A("    v_readlane_b32 s29, v8, 63")
        A("    v_readlane_b32 s30, v12, 63")
        A(f"    v_mov_b32 v10, {hex(f2u(1.0/N))}")
        A("    s_nop 0")
        A("    v_mul_f32 v11, s29, v10")
        A("    v_mul_f32 v8, s30, v10")
        A("    v_fma_f32 v8, -v11, v11, v8            ; var")
        A("    v_add_f32 v9, s28, v11                 ; mean")
        A("    s_setpc_b64 s[34:35]")
    if STAMP:
        A("L_stamp:")
        A("    s_mov_b64 exec, -1")
        A("    s_waitcnt vmcnt(0)")
        A("    s_memrealtime s[90:91]")
        A("    s_getreg_b32 s92, hwreg(HW_REG_HW_ID)" if DIAG < 0 else "    s_mov_b32 s92, s101")
        A("    s_getreg_b32 s93, hwreg(HW_REG_XCC_ID)")
        A("    s_mov_b32 s24, s12")
        A("    s_mov_b32 s25, s13")
        A("    s_mov_b32 s26, 0x1000000")
        A("    s_mov_b32 s27, 0x20000")
        A("    s_mul_i32 s3, s2, 9")
        A("    s_add_u32 s3, s3, s36")
        A("    s_lshl_b32 s3, s3, 6")
        A("    s_add_u32 s3, s3, 0x90000")
        A("    v_mov_b32 v8, s3")
        A("    s_waitcnt lgkmcnt(0)")
        for k, sr in enumerate([80, 82, 84, 86, 88, 90, 92, 93]): A(f"    v_mov_b32 v{12+k}, s{sr}")
        A("    s_mov_b64 exec, 1")
        A("    buffer_store_dwordx4 v[12:15], v8, s[24:27], 0 offen")
        A("    buffer_store_dwordx4 v[16:19], v8, s[24:27], 0 offen offset:16")
    A("L_end:")
    A("    s_endpgm")
    A('.section .rodata,"a"'); A(".p2align 6")
    A(f".amdhsa_kernel {name}_kernel")
    A(f"  .amdhsa_next_free_vgpr {nvgpr}")
    A(f"  .amdhsa_next_free_sgpr 102")
    A(f"  .amdhsa_accum_offset {(nvgpr+3)//4*4}")
    A("  .amdhsa_group_segment_fixed_size 0")
    A("  .amdhsa_kernarg_size 48")
    A("  .amdhsa_user_sgpr_count 2")
    A("  .amdhsa_user_sgpr_kernarg_segment_ptr 1")
    A("  .amdhsa_system_sgpr_workgroup_id_x 1")
    A("  .amdhsa_float_denorm_mode_32 3")
    A(".end_amdhsa_kernel")
    return "\n".join(L) + "\n"

if __name__ == "__main__":
    kw = {}; out = None
    for a in sys.argv[1:]:
        k, v = a.split("=", 1)
        if k == "out": out = v; continue
        if k not in ("SCHED", "CLS", "RBK"):
            try: v = int(v)
            except ValueError: pass
        kw[k] = v
    s = gen(**kw)
    if out: open(out, "w").write(s)
    else: sys.stdout.write(s)
```

```python
import sys, struct
def f2u(f): return struct.unpack('<I', struct.pack('<f', f))[0]

def gen(K=4, W=4, X0=14, R=1, LDNT="nt", STNT="sc0 sc1", STAMP=0, SLEEP=1, LSLEEP=1, FSLEEP=1, SPRIO=3, ALT=1,
        SPINMAX=3000, NOPOLL=0, SW=0, W2=0, W2AT=99, name="standalone__groupnorm__prompt", LASTNT=None, NLAST=0,
        SCHED=None, SLOT=16, DIAG=-1, CLS=None, PS=64, SWN=99, TLBW=0, DMA=0, RBK="", RBC=7, RBPAR=0, PRB=0, LOG=0, NBK=0, CPF=0):
    L = []; A = L.append
    GB = 14 * 131072
    N = 14 * 65536
    MEM = 8 * K
    GPC = 32 // K
    Tc = 28 // K
    T = 28
    CPT = K // 2
    WPC = 8 // CPT
    D0 = 32
    RBK = [int(ch) for ch in str(RBK)]
    VA2 = D0 + 4 * (T + len(RBK))
    nvgpr = VA2 + 3
    VLOG = VA2 + 2
    lgM = MEM.bit_length() - 1
    TAB = (MEM // 4) * PS
    NB = MEM // 16
    BLK = K * TAB + 256
    CNT = 256; FLG = 272; SC = 512
    hdr = open('standalone__groupnorm__prompt.s.ref').read().split('\n')
    for ln in hdr:
        if ln.startswith('; @launch'): break
        A(ln)
    RING = 0
    if DMA: RING = max(W, W2) + 1
    A(f"; @launch grid=(256,1,1) block=(576,1,1) lds={2048 + 8*RING*1024}")
    A('.amdgcn_target "amdgcn-amd-amdhsa--gfx950"')
    A(".text"); A(f".globl {name}_kernel"); A(".p2align 8"); A(f".type {name}_kernel,@function")
    A(f"{name}_kernel:")
    A("    s_cmp_ge_u32 s2, 256")
    A("    s_cbranch_scc1 L_end")
    A("    s_load_dwordx8 s[4:11], s[0:1], 0      ; x, g, b, out")
    A("    s_load_dwordx2 s[12:13], s[0:1], 40    ; ws")
    if STAMP: A("    s_memrealtime s[80:81]")
    A("    v_lshrrev_b32 v1, 6, v0")
    A("    v_and_b32 v0, 63, v0                   ; lane")
    A("    v_readfirstlane_b32 s36, v1")
    A(f"    s_lshr_b32 s41, s2, {lgM}")
    A(f"    s_and_b32 s38, s2, {MEM-1}                 ; member")
    A("    s_cmp_eq_u32 s36, 8")
    A("    s_cbranch_scc1 L_service")
    def reduce2(a, b, steps=("row_shr:1", "row_shr:2", "row_shr:4", "row_shr:8", "B15", "B31")):
        for m in steps:
            if m == "B15": mm = "row_bcast:15 row_mask:0xa bank_mask:0xf"
            elif m == "B31": mm = "row_bcast:31 row_mask:0xc bank_mask:0xf"
            else: mm = m + " row_mask:0xf bank_mask:0xf bound_ctrl:0"
            A("    s_nop 0" if b is not None else "    s_nop 1")
            A(f"    v_add_f32_dpp v{a}, v{a}, v{a} {mm}")
            if b is not None: A(f"    v_add_f32_dpp v{b}, v{b}, v{b} {mm}")
    A("    s_mov_b32 s40, 0xffff0000")
    A(f"    s_mul_i32 s39, s41, {GB}")
    A(f"    s_lshl_b32 s3, s38, {(WPC*1024).bit_length()-1}")
    A("    s_add_u32 s39, s39, s3")
    if CPT == 1:
        A("    s_lshl_b32 s3, s36, 10")
        A("    s_add_u32 s39, s39, s3")
    else:
        A(f"    s_and_b32 s3, s36, {WPC-1}")
        A("    s_lshl_b32 s3, s3, 10")
        A("    s_add_u32 s39, s39, s3")
        A(f"    s_lshr_b32 s37, s36, {WPC.bit_length()-1}")
        A("    s_lshl_b32 s3, s37, 17")
        A("    s_add_u32 s39, s39, s3")
    A("    v_lshl_add_u32 v1, v0, 4, s39")
    A(f"    s_mov_b32 s18, {32*GB}")
    A("    s_mov_b32 s19, 0x20000")
    A(f"    s_mov_b32 s22, {32*GB}")
    A("    s_mov_b32 s23, 0x20000")
    A(f"    v_xor_b32 v{VA2}, 0x2000, v1")
    if DMA:
        A(f"    s_mul_i32 s42, s36, {RING*1024}")
        A(f"    s_add_u32 s42, s42, 2048")
        A(f"    v_lshl_add_u32 v{VA2+1}, v0, 4, s42")
    nw = Tc * 512
    if CLS is None: classes = [(W, W, X0, W2, W2AT)]
    else: classes = [tuple(int(y) for y in x.split('.')) for x in str(CLS).split('_')]
    ncl = len(classes)
    if RBK:
        assert K == 2 and ncl == 1
        classes = classes * 2
        A("    s_bitcmp1_b32 s38, 0")
        A("    s_cbranch_scc1 L_class1")
    for cl in range(1, ncl):
        A(f"    s_and_b32 s3, s41, {ncl-1}")
        A(f"    s_cmp_eq_u32 s3, {cl}")
        A(f"    s_cbranch_scc1 L_class{cl}")
    def data_path(cl, W0, W, X0, W2, W2AT):
        pend = []
        tiles = []
        for k in range(K):
            for j in range(Tc):
                if k in RBK and j == RBC:
                    if cl == RBPAR: tiles += [(k, j, 0), (k, j, 1)]
                else:
                    tiles.append((k, j, (j & 1) if ALT else 0))
        T = len(tiles)
        X0 = X0 + T - 28
        first = [i for i in range(T) if i == 0 or tiles[i][0] != tiles[i-1][0]]
        last = [i for i in range(T) if i == T - 1 or tiles[i][0] != tiles[i+1][0]]
        def wait_for(op):
            if op not in pend: return
            idx = pend.index(op); n = len(pend) - 1 - idx
            A(f"    s_waitcnt vmcnt({n})")
            del pend[:idx + 1]
        logq = []
        def log(idx):
            if not LOG: return
            if logq:
                A("    s_waitcnt lgkmcnt(0)")
                A(f"    v_writelane_b32 v{VLOG}, s70, {logq.pop()}")
            if idx is not None:
                A("    s_memrealtime s[70:71]")
                logq.append(idx)
        def va(i): return f"v{VA2}" if tiles[i][2] else "v1"
        def so(i):
            o = tiles[i][0] * GPC * GB + tiles[i][1] * CPT * 131072
            if o == 0: return "0"
            A(f"    s_mov_b32 s3, {o}")
            return "s3"
        def ld(i):
            r = D0 + 4 * i
            if DMA:
                A(f"    s_add_u32 m0, s42, {(i % RING) * 1024}")
                o = so(i)
                if o == "0": A("    s_nop 0")
                A(f"    buffer_load_dwordx4 {va(i)}, s[16:19], {o} offen {LDNT} lds"); pend.append(('L', i))
                return
            o = so(i)
            A(f"    buffer_load_dwordx4 v[{r}:{r+3}], {va(i)}, s[16:19], {o} offen {LDNT}".rstrip()); pend.append(('L', i))
        def stats(i):
            r = D0 + 4 * i
            fst = i in first
            if fst:
                A(f"    v_readfirstlane_b32 s46, v{r}")
            for q in range(4):
                A(f"    v_lshlrev_b32 v{16+2*q}, 16, v{r+q}")
                A(f"    v_and_b32 v{17+2*q}, s40, v{r+q}")
                if fst and q == 0: A(f"    s_lshl_b32 s46, s46, 16                ; pivot")
            for q in range(4):
                d = (8 + 2 * q) if (fst and q < 2) else (16 + 2 * q)
                A(f"    v_pk_add_f32 v[{d}:{d+1}], v[{16+2*q}:{17+2*q}], s[46:47] op_sel_hi:[1,0] neg_lo:[0,1] neg_hi:[0,1]")
            for q in range(4):
                a1 = 8 + 2 * (q & 1); a2 = 12 + 2 * (q & 1)
                if fst and q < 2:
                    A(f"    v_pk_mul_f32 v[{a2}:{a2+1}], v[{a1}:{a1+1}], v[{a1}:{a1+1}]")
                else:
                    A(f"    v_pk_add_f32 v[{a1}:{a1+1}], v[{a1}:{a1+1}], v[{16+2*q}:{17+2*q}]")
                    A(f"    v_pk_fma_f32 v[{a2}:{a2+1}], v[{16+2*q}:{17+2*q}], v[{16+2*q}:{17+2*q}], v[{a2}:{a2+1}]")
        def post(k):
            nw = 512 * (last[k] - first[k] + 1)
            A("    v_pk_add_f32 v[8:9], v[8:9], v[10:11]")
            A("    v_pk_add_f32 v[12:13], v[12:13], v[14:15]")
            A("    s_nop 0")
            A("    v_add_f32 v8, v8, v9")
            A("    v_add_f32 v12, v12, v13")
            reduce2(8, 12)
            A(f"    v_mul_f32 v9, {hex(f2u(1.0/nw))}, v8")
            A("    s_mov_b32 exec_lo, 0")
            A("    s_mov_b32 exec_hi, 0x80000000")
            A(f"    v_fma_f32 v11, -v9, v8, v12            ; M2")
            A(f"    v_add_f32 v10, s46, v9                 ; mean")
            A(f"    ds_write_b64 v4, v[10:11] offset:{k*64}")
            A(f"    ds_add_u32 v5, v6 offset:{CNT+4*k}")
            A("    s_mov_b64 exec, -1")
        def get_scale(k):
            A(f"L_flag{k}_{cl}:")
            A(f"    ds_read_b32 v7, v5 offset:{FLG+4*k}")
            A(f"    ds_read_b64 v[2:3], v0 offset:{SC+128*k}")
            A("    s_waitcnt lgkmcnt(0)")
            A("    v_readfirstlane_b32 s3, v7")
            A("    s_cmp_lg_u32 s3, 0")
            A(f"    s_cbranch_scc1 L_flagok{k}_{cl}")
            A(f"    s_sleep {FSLEEP}")
            A(f"    s_branch L_flag{k}_{cl}")
            A(f"L_flagok{k}_{cl}:")
            if STAMP and k == 0: A("    s_memrealtime s[86:87]")
            if STAMP and k == K - 1: A("    s_memrealtime s[88:89]")
        def tail_end():
            if STAMP: A("    s_branch L_stamp")
            else: A("    s_endpgm")
        def norm_store(i, wait=True):
            if i in first and wait: get_scale(tiles[i][0])
            c = tiles[i][1] * CPT
            r = D0 + 4 * i
            t = 16 + 8 * (i & 1)
            sp = 48 + 2 * (i & 1)
            A(f"    v_readlane_b32 s{sp}, v2, {c}")
            A(f"    v_readlane_b32 s{sp+1}, v3, {c}")
            for q in range(4):
                A(f"    v_lshlrev_b32 v{t+2*q}, 16, v{r+q}")
                A(f"    v_and_b32 v{t+1+2*q}, s40, v{r+q}")
            for q in range(4):
                A(f"    v_pk_fma_f32 v[{t+2*q}:{t+1+2*q}], v[{t+2*q}:{t+1+2*q}], s[{sp}:{sp+1}], s[{sp}:{sp+1}] op_sel:[0,0,1] op_sel_hi:[1,0,1]")
            for q in range(4):
                A(f"    v_cvt_pk_bf16_f32 v{r+q}, v{t+2*q}, v{t+1+2*q}")
            o = so(i)
            st = [p for p in pend if p[0] == 'S']
            if SW and i < SWN and len(st) >= SW: wait_for(st[len(st)-SW])
            pol = LASTNT if (LASTNT is not None and i >= T - NLAST) else STNT
            A(f"    buffer_store_dwordx4 v[{r}:{r+3}], {va(i)}, s[20:23], {o} offen {pol}".rstrip()); pend.append(('S', i))
            log(32 + i)
        if PRB:
            A("    s_lshr_b32 s50, s36, 2")
            A(f"    s_mul_i32 s50, s50, {GPC}")
            A("    s_add_u32 s50, s50, s41")
            A(f"    s_mul_i32 s50, s50, {GB}")
            A(f"    s_add_u32 s50, s50, {7*131072}")
            A("    s_bfe_u32 s51, s36, 0x10001")
            A("    s_lshl_b32 s51, s51, 13")
            A("    s_add_u32 s50, s50, s51")
            A("    s_lshl_b32 s51, s38, 8")
            A("    s_add_u32 s50, s50, s51")
            A("    s_bitcmp1_b32 s36, 0")
        A("    s_waitcnt lgkmcnt(0)")
        if PRB:
            A("    s_cselect_b32 s52, s10, s4")
            A("    s_cselect_b32 s53, s11, s5")
            A("    s_add_u32 s52, s52, s50")
            A("    s_addc_u32 s53, s53, 0")
            for rr in range(PRB):
                A("    s_memtime s[54:55]")
                A(f"    s_load_dword s58, s[52:53], {hex(rr*0x4000)}")
                A("    s_waitcnt lgkmcnt(0)")
                A("    s_memtime s[56:57]")
                A("    s_waitcnt lgkmcnt(0)")
                A(f"    s_sub_u32 s{60+rr}, s56, s54")
        A("    s_mov_b32 s16, s4")
        A("    s_mov_b32 s17, s5")
        nxt = 0
        for i in range(W0): ld(i); nxt += 1
        A("    s_mov_b32 s20, s10")
        A("    s_mov_b32 s21, s11")
        if CPT > 1: A("    v_add_u32 v0, s37, v0")
        A("    s_lshl_b32 s3, s36, 3")
        A("    v_mov_b32 v4, s3")
        A("    v_mov_b32 v5, 0")
        A("    v_mov_b32 v6, 1")
        A("    v_lshlrev_b32 v0, 3, v0")
        A("    s_barrier")
        done = 0
        if SCHED is not None: sched = [0] * (T - len(str(SCHED))) + [int(ch) for ch in str(SCHED)]
        else: sched = [R if i >= X0 else 0 for i in range(T)]
        def step(i, nxt):
            wait_for(('L', i))
            log(i)
            if STAMP and i == 0: A("    s_memrealtime s[82:83]")
            if DMA: A(f"    ds_read_b128 v[{D0+4*i}:{D0+4*i+3}], v{VA2+1} offset:{(i % RING) * 1024}")
            win = min(W2, W + 2 * (i - W2AT + 1)) if (W2 and i >= W2AT) else min(W, W0 + i)
            while nxt < T and nxt <= i + win: ld(nxt); nxt += 1
            if NBK and chk[0] and X0 <= i < T - 1:
                A(f"    ds_read_b32 v7, v5 offset:{FLG}")
                A(f"    ds_read_b64 v[2:3], v0 offset:{SC}")
            if DMA: A("    s_waitcnt lgkmcnt(0)")
            stats(i)
            if i in last: post(tiles[i][0])
            return nxt
        chk = [True]
        if not NBK:
            for i in range(T):
                nxt = step(i, nxt)
                for _ in range(sched[i]):
                    if last[tiles[done][0]] <= i:
                        norm_store(done); done += 1
            if STAMP: A("    s_memrealtime s[84:85]")
            while done < T: norm_store(done); done += 1
        else:
            assert SW == 0 and not LOG
            saved = {}
            for i in range(T):
                nxt = step(i, nxt)
                if X0 <= i < T - 1:
                    A("    s_waitcnt lgkmcnt(0)")
                    A("    v_readfirstlane_b32 s3, v7")
                    A("    s_cmp_lg_u32 s3, 0")
                    A(f"    s_cbranch_scc1 L_early{i}_{cl}")
                    saved[i] = (list(pend), nxt)
            if STAMP: A("    s_memrealtime s[84:85]")
            for j in range(T):
                A(f"L_st{j}_{cl}:")
                norm_store(j)
            tail_end()
            chk[0] = False
            for i0, (pd, nx) in saved.items():
                A(f"L_early{i0}_{cl}:")
                if STAMP: A("    s_memrealtime s[86:87]")
                pend[:] = pd; nxt = nx; done = 0
                norm_store(0, False); done = 1
                for i in range(i0 + 1, T):
                    nxt = step(i, nxt)
                    norm_store(done); done += 1
                if STAMP: A("    s_memrealtime s[84:85]")
                A(f"    s_branch L_st{done}_{cl}")
            return
        if LOG:
            log(None)
            A("    s_mul_i32 s3, s2, 8")
            A("    s_add_u32 s3, s3, s36")
            A("    s_lshl_b32 s3, s3, 8")
            A("    s_add_u32 s3, s3, 0x200000")
            A("    v_lshrrev_b32 v2, 1, v0")
            A("    v_add_u32 v2, s3, v2")
            A("    s_mov_b32 s24, s12")
            A("    s_mov_b32 s25, s13")
            A("    s_mov_b32 s26, 0x1000000")
            A("    s_mov_b32 s27, 0x20000")
            A(f"    buffer_store_dword v{VLOG}, v2, s[24:27], 0 offen")
        if PRB:
            A("    s_waitcnt lgkmcnt(0)")
            A("    s_lshl_b32 s61, s61, 16")
            A("    s_and_b32 s60, s60, 0xffff")
            A("    s_or_b32 s86, s60, s61")
        if STAMP: A("    s_branch L_stamp")
        else: A("    s_endpgm")
    for cl, pr in enumerate(classes):
        if cl: A(f"L_class{cl}:")
        data_path(cl, *pr)
    A("L_service:")
    if CPF:
        A("    s_getpc_b64 s[30:31]")
        A("L_pc:")
        A(f"    s_sub_u32 s30, s30, L_pc-{name}_kernel")
        A("    s_subb_u32 s31, s31, 0")
        A("    s_lshr_b32 s3, s2, 3")
        A(f"    s_mul_i32 s3, s3, {CPF*64}")
        A("    s_add_u32 s30, s30, s3")
        A("    s_addc_u32 s31, s31, 0")
        for j in range(CPF):
            A(f"    s_load_dword s{44+j}, s[30:31], {hex(64*j)}")
    if SPRIO: A(f"    s_setprio {SPRIO}")
    A("    v_mov_b32 v4, 0")
    A("    v_mov_b32 v5, 0")
    A("    v_mov_b32 v6, 0")
    A("    v_mov_b32 v7, 0")
    A(f"    ds_write_b128 v4, v[4:7] offset:{CNT}")
    A(f"    ds_write_b128 v4, v[4:7] offset:{FLG}")
    A("    s_mov_b32 s30, 896")
    A("    s_mov_b32 s31, 0x20000")
    A("    s_mov_b32 s34, 896")
    A("    s_mov_b32 s35, 0x20000")
    A("    s_mul_i32 s3, s41, 28")
    A("    v_lshl_add_u32 v8, v0, 1, s3")
    A(f"    s_mul_i32 s3, s41, {BLK}")
    A(f"    s_add_u32 s14, s3, {K*TAB}")
    A("    s_lshr_b32 s15, s38, 2")
    A(f"    s_mul_i32 s15, s15, {PS}")
    A("    s_and_b32 s16, s38, 3")
    A("    s_lshl_b32 s16, s16, 4")
    A("    s_add_u32 s15, s15, s16")
    A(f"    s_mul_i32 s24, s41, {GB}")
    A("    s_waitcnt lgkmcnt(0)")
    A("    s_barrier")
    A("    s_load_dwordx2 s[20:21], s[12:13], s14 glc ; epoch")
    for x, y in [(28, 6), (29, 7), (32, 8), (33, 9)]: A(f"    s_mov_b32 s{x}, s{y}")
    for k in range(K):
        A(f"    buffer_load_ushort v{20+2*k}, v8, s[28:31], 0 offen offset:{k*GPC*28}")
        A(f"    buffer_load_ushort v{21+2*k}, v8, s[32:35], 0 offen offset:{k*GPC*28}")
    A("    v_lshlrev_b32 v1, 3, v0                ; lane*8")
    A("    s_add_u32 s26, s12, s3")
    A("    s_addc_u32 s27, s13, 0")
    A("    s_mov_b32 s16, s4")
    A("    s_mov_b32 s17, s5")
    A(f"    s_mov_b32 s18, {32*GB}")
    A("    s_mov_b32 s19, 0x20000")
    if TLBW:
        A("    v_lshrrev_b32 v30, 1, v0")
        A(f"    s_mov_b32 s3, {GPC*GB}")
        A("    v_mul_lo_u32 v30, v30, s3")
        A("    v_and_b32 v31, 1, v0")
        A(f"    v_mul_u32_u24 v31, {GB-128}, v31")
        A("    v_add3_u32 v30, v30, v31, s24")
        A(f"    s_mov_b64 exec, {hex((1<<(2*K))-1)}")
        A("    buffer_load_dword v31, v30, s[16:19], 0 offen nt")
        A("    s_mov_b32 s28, s10")
        A("    s_mov_b32 s29, s11")
        A(f"    s_mov_b32 s30, {32*GB}")
        A("    buffer_load_dword v29, v30, s[28:31], 0 offen nt")
        A("    s_mov_b64 exec, -1")
    if RBK:
        A(f"    s_mov_b32 s3, {hex(f2u(float((Tc + (1 if RBPAR == 0 else -1)) * 512)))}")
        A("    s_bitcmp1_b32 s38, 0")
        A(f"    s_cselect_b32 s3, {hex(f2u(float((Tc + (1 if RBPAR == 1 else -1)) * 512)))}, s3")
        A("    v_mov_b32 v28, s3")
    A("    v_mov_b32 v5, 1")
    A("    s_mov_b32 s33, 0")
    if STAMP: A("    s_mov_b32 s22, s80")
    A("    s_waitcnt lgkmcnt(0)")
    A("    s_mul_i32 s20, s20, 0x9E3779B1")
    A("    s_add_u32 s20, s20, 0x7F4A7C15         ; tag1")
    A("    s_mul_i32 s21, s21, 0x85EBCA6D")
    A("    s_add_u32 s21, s21, 0x2545F491         ; tag2")
    for k in range(K):
        A(f"L_wait{k}:")
        A(f"    ds_read_b32 v6, v4 offset:{CNT+4*k}")
        A(f"    ds_read_b64 v[16:17], v1 offset:{64*k}")
        A("    s_waitcnt lgkmcnt(0)")
        A("    v_readfirstlane_b32 s3, v6")
        A("    s_cmp_eq_u32 s3, 8")
        A(f"    s_cbranch_scc1 L_got{k}")
        A(f"    s_sleep {LSLEEP}")
        A(f"    s_branch L_wait{k}")
        A(f"L_got{k}:")
        if STAMP and DIAG < 0 and k in (0, K-1): A(f"    s_memrealtime s[{4+4*(k>0)}:{5+4*(k>0)}]")
        if STAMP and DIAG == k: A("    s_memrealtime s[4:5]")
        A("    s_mov_b64 exec, 0xff")
        A("    v_mov_b32 v8, v16")
        reduce2(8, None, ("row_shr:1", "row_shr:2", "row_shr:4"))
        A(f"    v_mul_f32 v8, {hex(f2u(0.125))}, v8")
        A("    s_mov_b32 s29, s20")
        A("    v_readlane_b32 s28, v8, 7")
        A("    s_mov_b32 s31, s21")
        A(f"    s_add_u32 s3, s15, {TAB*k}")
        A("    v_subrev_f32 v6, s28, v16")
        if k in RBK: A("    v_mul_f32 v9, v28, v6")
        else: A(f"    v_mul_f32 v9, {hex(f2u(float(nw)))}, v6")
        A("    v_fma_f32 v14, v9, v6, v17")
        reduce2(14, None, ("row_shr:1", "row_shr:2", "row_shr:4"))
        A(f"    s_add_u32 s23, s15, {TAB*k+8}")
        A("    v_readlane_b32 s30, v14, 7")
        A("    s_mov_b64 exec, -1")
        A(f"    s_mov_b32 s25, {SPINMAX}")
        A("    s_nop 1")
        if not NOPOLL:
            A("    s_atomic_swap_x2 s[28:29], s[26:27], s3")
            A("    s_atomic_swap_x2 s[30:31], s[26:27], s23")
        for b in range(NB):
            A(f"L_poll{k}_{b}:")
            for j in range(4):
                A(f"    s_load_dwordx16 s[{36+16*j}:{51+16*j}], s[26:27], {hex(TAB*k+PS*(4*b+j))} glc")
            A("    s_waitcnt lgkmcnt(0)")
            if not NOPOLL:
                A("    s_xor_b32 s3, s37, s20")
                for j in range(16):
                    if j:
                        A(f"    s_xor_b32 s23, s{37+4*j}, s20")
                        A(f"    s_or_b32 s3, s3, s23")
                    A(f"    s_xor_b32 s23, s{39+4*j}, s21")
                    A(f"    s_or_b32 s3, s3, s23")
                A(f"    s_cbranch_scc0 L_ready{k}_{b}")
                if SLEEP: A(f"    s_sleep {SLEEP}")
                A("    s_sub_u32 s25, s25, 1")
                A("    s_cmp_lg_u32 s25, 0")
                A(f"    s_cbranch_scc1 L_poll{k}_{b}")
                A(f"    s_mov_b32 s32, {k*GPC*GB}")
                A(f"    s_getpc_b64 s[34:35]")
                A(f"L_ret{k}_{b}:")
                A(f"    s_add_u32 s34, s34, L_fin{k}-L_ret{k}_{b}")
                A(f"    s_addc_u32 s35, s35, 0")
                A(f"    s_branch L_fallback")
            A(f"L_ready{k}_{b}:")
            if STAMP and DIAG == k and b == NB - 1:
                A("    s_memrealtime s[6:7]")
                A(f"    s_sub_u32 s101, {SPINMAX}, s25")
            if b == 0:
                A("    v_mov_b32 v9, s36                      ; reference")
                A("    v_mov_b32 v10, 0")
                A("    v_mov_b32 v11, 0")
                A("    v_mov_b32 v12, 0")
                A("    v_mov_b32 v13, 0")
                A("    v_mov_b32 v14, s38")
                A("    v_mov_b32 v15, 0")
            for j in range(16):
                if b == 0 and j == 0: continue
                p = j & 1
                A(f"    v_sub_f32 v{16+p}, s{36+4*j}, v9")
                A(f"    v_add_f32 v{14+p}, s{38+4*j}, v{14+p}")
                A(f"    v_add_f32 v{10+p}, v{16+p}, v{10+p}")
                A(f"    v_fma_f32 v{12+p}, v{16+p}, v{16+p}, v{12+p}")
        A("    s_mov_b32 s33, 1")
        if k in RBK:
            we = (Tc + (1 if RBPAR == 0 else -1)) / Tc; wo = (Tc + (1 if RBPAR == 1 else -1)) / Tc
            A(f"    v_mul_f32 v10, {hex(f2u(we))}, v10")
            A(f"    v_mul_f32 v11, {hex(f2u(wo))}, v11")
            A(f"    v_mul_f32 v12, {hex(f2u(we))}, v12")
            A(f"    v_mul_f32 v13, {hex(f2u(wo))}, v13")
        A("    v_add_f32 v10, v10, v11")
        A("    v_add_f32 v12, v12, v13")
        A("    v_add_f32 v14, v14, v15")
        A(f"    v_mul_f32 v10, {hex(f2u(1.0/MEM))}, v10")
        A(f"    v_mul_f32 v12, {hex(f2u(1.0/MEM))}, v12")
        A(f"    v_mul_f32 v8, {hex(f2u(1.0/N))}, v14")
        A("    v_fma_f32 v12, -v10, v10, v12")
        A("    v_add_f32 v9, v9, v10")
        A("    v_add_f32 v8, v8, v12                  ; var")
        A(f"L_fin{k}:")
        if STAMP and DIAG < 0 and k in (0, K-1): A(f"    s_memrealtime s[{6+4*(k>0)}:{7+4*(k>0)}]")
        if STAMP and DIAG == k: A("    s_memrealtime s[8:9]")
        A("    v_max_f32 v8, 0, v8")
        A("    v_cvt_pk_bf16_f32 v12, v9, v9")
        A("    v_lshlrev_b32 v12, 16, v12")
        A("    v_sub_f32 v13, v9, v12")
        A("    v_fma_f32 v8, v13, v13, v8             ; E[(x-mu_b)^2]")
        A("    v_cvt_pk_bf16_f32 v8, v8, v8")
        A("    v_lshlrev_b32 v8, 16, v8")
        A(f"    v_add_f32 v8, {hex(f2u(1e-5))}, v8")
        A("    v_cvt_pk_bf16_f32 v8, v8, v8")
        A("    v_lshlrev_b32 v8, 16, v8")
        A("    v_sqrt_f32 v8, v8")
        A("    s_waitcnt vmcnt(0)")
        A("    v_cvt_pk_bf16_f32 v8, v8, v8")
        A("    v_lshlrev_b32 v8, 16, v8")
        A("    v_rcp_f32 v8, v8")
        A(f"    v_lshlrev_b32 v6, 16, v{20+2*k}")
        A(f"    v_lshlrev_b32 v7, 16, v{21+2*k}")
        A("    v_mul_f32 v6, v8, v6                   ; scale_c")
        A("    v_fma_f32 v7, -v12, v6, v7             ; shift_c")
        A("    s_mov_b64 exec, 0xffff")
        A(f"    ds_write_b64 v1, v[6:7] offset:{SC+128*k}")
        A(f"    ds_write_b32 v4, v5 offset:{FLG+4*k}")
        if STAMP and DIAG == k: A("    s_memrealtime s[10:11]")
        A("    s_mov_b64 exec, -1")
    A("    s_cmp_eq_u32 s33, 0")
    A("    s_cbranch_scc1 L_svc_done")
    A("    s_mov_b32 s16, s12")
    A("    s_mov_b32 s17, s13")
    A("    s_mov_b32 s18, 0x10000")
    A("    v_mov_b32 v6, s20")
    A("    v_mov_b32 v7, s21")
    A("    v_mov_b32 v8, s14")
    A("    s_mov_b64 exec, 1")
    if not NOPOLL: A("    buffer_store_dwordx2 v[6:7], v8, s[16:19], 0 offen sc1")
    A("L_svc_done:")
    if STAMP:
        A("    s_waitcnt lgkmcnt(0)")
        A("    s_mov_b32 s80, s22")
        A("    s_mov_b32 s82, s4")
        A("    s_mov_b32 s84, s6")
        A("    s_mov_b32 s86, s8")
        A("    s_mov_b32 s88, s10")
        A("    s_mov_b32 s36, 8")
        A("    s_branch L_stamp")
    else:
        A("    s_endpgm")
    if not NOPOLL:
        A("L_fallback:")
        A("    s_add_u32 s32, s32, s24")
        A("    v_lshl_add_u32 v30, v0, 4, s32")
        A("    s_mov_b32 s23, 0xffff0000")
        A("    buffer_load_dword v31, v30, s[16:19], 0 offen")
        for z in range(8, 16): A(f"    v_mov_b32 v{z}, 0")
        A("    s_mov_b32 s3, 0")
        A("    s_waitcnt vmcnt(0)")
        A("    v_readfirstlane_b32 s28, v31")
        A("    s_lshl_b32 s28, s28, 16                ; pivot")
        A("L_fb_loop:")
        for j in range(4):
            A(f"    buffer_load_dwordx4 v[{32+4*j}:{35+4*j}], v30, s[16:19], s3 offen offset:{1024*j}")
        A("    s_waitcnt vmcnt(0)")
        for q in range(16):
            A(f"    v_lshlrev_b32 v{48+2*q}, 16, v{32+q}")
            A(f"    v_and_b32 v{49+2*q}, s23, v{32+q}")
        for q in range(16):
            A(f"    v_pk_add_f32 v[{48+2*q}:{49+2*q}], v[{48+2*q}:{49+2*q}], s[28:29] op_sel_hi:[1,0] neg_lo:[0,1] neg_hi:[0,1]")
        for q in range(16):
            a1 = 8 + 2 * (q & 1); a2 = 12 + 2 * (q & 1)
            A(f"    v_pk_add_f32 v[{a1}:{a1+1}], v[{a1}:{a1+1}], v[{48+2*q}:{49+2*q}]")
            A(f"    v_pk_fma_f32 v[{a2}:{a2+1}], v[{48+2*q}:{49+2*q}], v[{48+2*q}:{49+2*q}], v[{a2}:{a2+1}]")
        A("    s_add_u32 s3, s3, 4096")
        A(f"    s_cmp_lt_u32 s3, {GB}")
        A("    s_cbranch_scc1 L_fb_loop")
        A("    v_pk_add_f32 v[8:9], v[8:9], v[10:11]")
        A("    v_pk_add_f32 v[12:13], v[12:13], v[14:15]")
        A("    s_nop 0")
        A("    v_add_f32 v8, v8, v9")
        A("    v_add_f32 v12, v12, v13")
        reduce2(8, 12)
        A("    s_nop 0")
        A("    v_readlane_b32 s29, v8, 63")
        A("    v_readlane_b32 s30, v12, 63")
        A(f"    v_mov_b32 v10, {hex(f2u(1.0/N))}")
        A("    s_nop 0")
        A("    v_mul_f32 v11, s29, v10")
        A("    v_mul_f32 v8, s30, v10")
        A("    v_fma_f32 v8, -v11, v11, v8            ; var")
        A("    v_add_f32 v9, s28, v11                 ; mean")
        A("    s_setpc_b64 s[34:35]")
    if STAMP:
        A("L_stamp:")
        A("    s_mov_b64 exec, -1")
        A("    s_waitcnt vmcnt(0)")
        A("    s_memrealtime s[90:91]")
        A("    s_getreg_b32 s92, hwreg(HW_REG_HW_ID)" if DIAG < 0 else "    s_mov_b32 s92, s101")
        A("    s_getreg_b32 s93, hwreg(HW_REG_XCC_ID)")
        A("    s_mov_b32 s24, s12")
        A("    s_mov_b32 s25, s13")
        A("    s_mov_b32 s26, 0x1000000")
        A("    s_mov_b32 s27, 0x20000")
        A("    s_mul_i32 s3, s2, 9")
        A("    s_add_u32 s3, s3, s36")
        A("    s_lshl_b32 s3, s3, 6")
        A("    s_add_u32 s3, s3, 0x90000")
        A("    v_mov_b32 v8, s3")
        A("    s_waitcnt lgkmcnt(0)")
        for k, sr in enumerate([80, 82, 84, 86, 88, 90, 92, 93]): A(f"    v_mov_b32 v{12+k}, s{sr}")
        A("    s_mov_b64 exec, 1")
        A("    buffer_store_dwordx4 v[12:15], v8, s[24:27], 0 offen")
        A("    buffer_store_dwordx4 v[16:19], v8, s[24:27], 0 offen offset:16")
    A("L_end:")
    A("    s_endpgm")
    A('.section .rodata,"a"'); A(".p2align 6")
    A(f".amdhsa_kernel {name}_kernel")
    A(f"  .amdhsa_next_free_vgpr {nvgpr}")
    A(f"  .amdhsa_next_free_sgpr 102")
    A(f"  .amdhsa_accum_offset {(nvgpr+3)//4*4}")
    A("  .amdhsa_group_segment_fixed_size 0")
    A("  .amdhsa_kernarg_size 48")
    A("  .amdhsa_user_sgpr_count 2")
    A("  .amdhsa_user_sgpr_kernarg_segment_ptr 1")
    A("  .amdhsa_system_sgpr_workgroup_id_x 1")
    A("  .amdhsa_float_denorm_mode_32 3")
    A(".end_amdhsa_kernel")
    return "\n".join(L) + "\n"

if __name__ == "__main__":
    kw = {}; out = None
    for a in sys.argv[1:]:
        k, v = a.split("=", 1)
        if k == "out": out = v; continue
        if k not in ("SCHED", "CLS", "RBK"):
            try: v = int(v)
            except ValueError: pass
        kw[k] = v
    s = gen(**kw)
    if out: open(out, "w").write(s)
    else: sys.stdout.write(s)
```
